```python
import torch

def _softmax(x, axis=-1):
    return torch.softmax(x, dim=axis)

def _gelu(x):
    return torch.nn.functional.gelu(x, approximate='tanh')

def _silu(x):
    return torch.nn.functional.silu(x)

def _sigmoid(x):
    return torch.sigmoid(x)

def _layernorm(x, axis=-1, eps=1e-05):
    m = x.mean(dim=axis, keepdim=True)
    v = x.var(dim=axis, keepdim=True, unbiased=False)
    return (x - m) / torch.sqrt(v + eps)

def _scatter_add(tgt, idx, src, axis=0):
    return tgt.clone().index_add_(axis, idx, src)

def _segment_sum(src, seg, n):
    out = torch.zeros((n,) + src.shape[1:], dtype=src.dtype)
    return out.index_add_(0, seg, src)

def _pad(x, pw):
    flat = tuple((v for pair in reversed(pw) for v in pair))
    return torch.nn.functional.pad(x, flat)
kernel_name = 'adaLN_cond__sliding_block_cached__dense_activation_silu__decode'

def setup_inputs():

    _w = lambda a: (lambda t: t.to(torch.bfloat16) if t.is_floating_point() else t)(torch.as_tensor(a))

    def _A_setup():
        B, Sq, D = (8, 1, 640)
        Hq, Hkv, Sk, Dh = (32, 32, 4096, 128)
        assert Hq % Hkv == 0, (Hq, Hkv)
        return {'x': _w((lambda *s: torch.randn(*s, dtype=torch.bfloat16) * 0.1)(B, Sq, D)), 'k_cache': _w((lambda *s: torch.randn(*s, dtype=torch.bfloat16) * 0.8)(B, Hkv, Sk, Dh)), 'v_cache': _w((lambda *s: torch.randn(*s, dtype=torch.bfloat16) * 3.2)(B, Hkv, Sk, Dh)), 'wq': _w((lambda *s: torch.randn(*s, dtype=torch.bfloat16) * 0.8)(D, Hq * Dh) * D ** (-0.5)), 'wo': _w((lambda *s: torch.randn(*s, dtype=torch.bfloat16) * 3.2)(Hq * Dh, D) * (Hq * Dh) ** (-0.5))}
    _A_in = _A_setup()

    def _B_setup():
        B, S, D, F = (8, 1, 640, 1728)
        return {'x': _w((lambda *s: torch.randn(*s, dtype=torch.bfloat16) * 0.1)(B, S, D)), 'w1': _w((lambda *s: torch.randn(*s, dtype=torch.bfloat16) * 3.2)(D, F) * D ** (-0.5)), 'w2': _w((lambda *s: torch.randn(*s, dtype=torch.bfloat16) * 3.2)(F, D) * F ** (-0.5))}
    _B_in = _B_setup()
    return {'A_x': _A_in['x'], 'A_k_cache': _A_in['k_cache'], 'A_v_cache': _A_in['v_cache'], 'A_wq': _A_in['wq'], 'A_wo': _A_in['wo'], 'B_x': _B_in['x'], 'B_w1': _B_in['w1'], 'B_w2': _B_in['w2'], 'c': _w((lambda *s: torch.randn(*s, dtype=torch.bfloat16) * 0.1)(8, 640) * 8.0), 'w_mod': _w((lambda *s: torch.randn(*s, dtype=torch.bfloat16) * 0.1)(640, 6 * 640) * 640 ** (-0.5) * 8.0)}

def reference(A_x, A_k_cache, A_v_cache, A_wq, A_wo, B_x, B_w1, B_w2, c, w_mod):

    def _A_ref(x, k_cache, v_cache, wq, wo):
        B, Sq, D = x.shape
        Hq, Dh = (32, 128)
        Hkv, Sk = (k_cache.shape[1], k_cache.shape[2])
        W = min(4096, max(256, Sk // 4))
        rep = Hq // Hkv
        q = (lambda x, *d: x.permute(*d))((x @ wq).reshape(B, Sq, Hq, Dh), 0, 2, 1, 3)
        k = (lambda x, n, axis: torch.repeat_interleave(x, n, dim=axis))(k_cache[:, :, Sk - W:, :], rep, axis=1)
        v = (lambda x, n, axis: torch.repeat_interleave(x, n, dim=axis))(v_cache[:, :, Sk - W:, :], rep, axis=1)
        scores = torch.einsum('bhqd,bhkd->bhqk', q, k) * Dh ** (-0.5)
        p = _softmax(scores, axis=-1)
        o = torch.einsum('bhqk,bhkd->bhqd', p, v)
        return (lambda x, *d: x.permute(*d))(o, 0, 2, 1, 3).reshape(B, Sq, Hq * Dh) @ wo

    def _B_ref(x, w1, w2):
        h = torch.einsum('bsd,df->bsf', x, w1)
        h = _silu(h)
        out = torch.einsum('bsf,fd->bsd', h, w2)
        return out
    x = A_x
    mod = (_silu(c) @ w_mod).reshape(c.shape[0], 6, 1, -1)
    sa, ca, ga, sb, cb, gb = (mod[:, 0].clone(), mod[:, 1].clone(), mod[:, 2].clone(), mod[:, 3].clone(), mod[:, 4].clone(), mod[:, 5].clone())
    h = _layernorm(x, axis=-1) * (1 + ca) + sa
    x = x + ga * _A_ref(h, A_k_cache, A_v_cache, A_wq, A_wo)
    h = _layernorm(x, axis=-1) * (1 + cb) + sb
    x = x + gb * _B_ref(h, B_w1, B_w2)
    return x
```

```python
import re

TRANS = ("v_exp_f32", "v_log_f32", "v_rcp_f32", "v_rsq_f32", "v_sqrt_f32", "v_sin_f32", "v_cos_f32")
_REG = re.compile(r"^(-|\|)?(v|s|a)(\d+)\|?$")
_RNG = re.compile(r"^(-)?(v|s|a)\[(\d+):(\d+)\]$")


def regs_of(op):
    op = op.strip()
    if op.startswith("abs(") and op.endswith(")"):
        op = op[4:-1]
    m = _REG.match(op)
    if m:
        return [(m.group(2), int(m.group(3)))]
    m = _RNG.match(op)
    if m:
        return [(m.group(2), i) for i in range(int(m.group(3)), int(m.group(4)) + 1)]
    if op == "vcc":
        return [("s", 106), ("s", 107)]
    if op == "vcc_lo":
        return [("s", 106)]
    if op == "vcc_hi":
        return [("s", 107)]
    if op == "m0":
        return [("s", 124)]
    if op == "exec":
        return [("s", 126), ("s", 127)]
    return []


def split_ops(rest):
    out, depth, cur = [], 0, ""
    for ch in rest:
        if ch in "[(":
            depth += 1
        if ch in "])":
            depth -= 1
        if ch == "," and depth == 0:
            out.append(cur.strip())
            cur = ""
        else:
            cur += ch
    if cur.strip():
        out.append(cur.strip())
    if out:
        parts = out[-1].split()
        mods = parts[1:]
        out[-1] = parts[0]
    else:
        mods = []
    return out, mods


class Asm:
    def __init__(self):
        self.lines = []
        self.t = 0
        self.w = {}
        self.store_data = {}
        self.mfma_c = {}
        self.nlabel = 0
        self.auto_nops = 0

    def raw(self, s):
        self.lines.append(s)

    def comment(self, s):
        self.lines.append("  ; " + s)

    def label(self, name):
        self.lines.append(name + ":")

    def newlabel(self, p="L"):
        self.nlabel += 1
        return f"{p}_{self.nlabel}"

    def nop(self, n):
        while n > 0:
            k = min(n, 16)
            self.lines.append(f"  s_nop {k-1}")
            self.t += k
            n -= k

    def settle(self):
        self.nop(0)

    def __call__(self, s):
        s = s.strip()
        opc, _, rest = s.partition(" ")
        ops, mods = split_ops(rest)
        modstr = " ".join(mods)
        need = 0

        def dist(t0):
            return self.t - t0 - 1

        def req(t0, n):
            nonlocal need
            need = max(need, n - dist(t0))

        is_mfma = opc.startswith("v_mfma") or opc.startswith("v_smfmac")
        is_valu = opc.startswith("v_") and not is_mfma
        is_vmem = opc.startswith(("buffer_", "global_", "flat_"))
        is_ds = opc.startswith("ds_")
        is_salu = opc.startswith("s_")
        is_dpp = is_valu and ("_dpp" in opc)
        is_perml = opc.startswith("v_permlane")
        is_dot = opc.startswith("v_dot")
        is_rl = opc.startswith(("v_readlane", "v_readfirstlane"))
        dsts, srcs = [], []
        if opc == "s_nop":
            self.lines.append("  " + s)
            self.t += int(ops[0]) + 1
            return
        if is_valu or is_mfma:
            nd = 1
            if opc.startswith(("v_add_co", "v_sub_co", "v_addc_co", "v_subb_co", "v_div_scale", "v_mad_u64")):
                nd = 2
            for o in ops[:nd]:
                dsts += regs_of(o)
            for o in ops[nd:]:
                srcs += regs_of(o)
            if is_perml:
                dsts = regs_of(ops[0]) + regs_of(ops[1])
                srcs = list(dsts)
            if opc.startswith(("v_fmac", "v_dot2c", "v_mac", "v_pk_fmac", "v_smfmac")) or (is_dpp and ("bank_mask:0xf" not in modstr or "row_mask:0xf" not in modstr)):
                srcs += regs_of(ops[0])
            if opc.startswith("v_cndmask") and len(ops) == 3:
                srcs += regs_of("vcc")
        elif is_vmem:
            lds = "lds" in mods
            if "_load" in opc and not lds:
                dsts = regs_of(ops[0])
                for o in ops[1:]:
                    srcs += regs_of(o)
            else:
                for o in ops:
                    srcs += regs_of(o)
                if "atomic" in opc and "sc0" in mods:
                    dsts = regs_of(ops[0])
            if lds:
                srcs += regs_of("m0")
        elif is_ds:
            if opc.startswith(("ds_read", "ds_bpermute", "ds_permute", "ds_swizzle")) or "_rtn" in opc:
                dsts = regs_of(ops[0])
                for o in ops[1:]:
                    srcs += regs_of(o)
            else:
                for o in ops:
                    srcs += regs_of(o)
        elif is_salu:
            if opc.startswith(("s_cmp", "s_cbranch", "s_branch", "s_waitcnt", "s_barrier", "s_sleep", "s_setprio", "s_endpgm", "s_bitcmp")):
                for o in ops:
                    srcs += regs_of(o)
            else:
                if ops:
                    dsts = regs_of(ops[0])
                for o in ops[1:]:
                    srcs += regs_of(o)

        for idx, r in enumerate(srcs):
            if r not in self.w:
                continue
            kind, t0, o0, ex = self.w[r]
            if r[0] == "v":
                if kind == "valu":
                    if is_dpp and r in regs_of(ops[1]):
                        req(t0, 2)
                    if is_perml:
                        req(t0, 2)
                    if is_mfma:
                        req(t0, 2)
                    if is_rl:
                        req(t0, 1)
                    if o0.startswith(TRANS) and (is_valu or is_mfma) and not opc.startswith(TRANS):
                        req(t0, 1)
                    if o0.startswith(TRANS) and (is_vmem or is_ds):
                        req(t0, 1)
                    if o0.startswith("v_dot"):
                        same = o0 == opc
                        isC = same and (r in regs_of(ops[-1]) or (opc.startswith("v_dot2c") and r in regs_of(ops[0]))) and not any(r in regs_of(o) for o in ops[1:3])
                        if not isC:
                            req(t0, 3)
                    if "sdwa" in o0 or "op_sel" in (ex or ""):
                        req(t0, 1)
                elif kind == "mfma":
                    if is_mfma:
                        cregs = regs_of(ops[3]) if opc.startswith("v_mfma") else regs_of(ops[0])
                        inAB = any(r in regs_of(o) for o in ops[1:3])
                        if inAB:
                            req(t0, 8)
                        elif cregs != ex:
                            req(t0, 6)
                    else:
                        req(t0, 8)
            elif r[0] == "s":
                if kind == "valu":
                    if is_valu or is_mfma:
                        req(t0, 4 if is_rl else 2)
                    if is_vmem:
                        req(t0, 5)
                    if is_salu and not opc.startswith("s_cbranch"):
                        req(t0, 1)
                elif kind == "salu" and r == ("s", 124) and is_vmem:
                    req(t0, 1)
        for r in dsts:
            if r in self.w:
                kind, t0, o0, ex = self.w[r]
                if kind == "mfma" and not is_mfma:
                    req(t0, 8)
                if kind == "mfma" and is_mfma:
                    cregs = regs_of(ops[3]) if opc.startswith("v_mfma") else regs_of(ops[0])
                    if r not in cregs:
                        req(t0, 8)
                if kind == "valu" and o0.startswith("v_dot") and o0 != opc and (is_valu or is_mfma):
                    req(t0, 3)
            if (is_valu or is_mfma) and r in self.store_data:
                req(self.store_data[r], 2)
            if is_valu and r in self.mfma_c:
                req(self.mfma_c[r], 3)
        if need > 0:
            self.auto_nops += need
            self.nop(need)
        self.lines.append("  " + s)
        kind = "mfma" if is_mfma else "valu" if is_valu else "salu" if is_salu else "mem"
        for r in dsts:
            self.w[r] = (kind, self.t, opc, regs_of(ops[0]) if is_mfma else modstr)
        if is_vmem and ("store" in opc) and ("x3" in opc or "x4" in opc):
            dataop = ops[0] if opc.startswith("buffer") else ops[1]
            for r in regs_of(dataop):
                self.store_data[r] = self.t
        if is_mfma and opc.startswith("v_mfma"):
            for r in regs_of(ops[3]):
                self.mfma_c[r] = self.t
        self.t += 1

    def text(self):
        return "\n".join(self.lines) + "\n"
```

```python
import sys, os, math, struct
sys.path.insert(0, os.path.dirname(os.path.abspath(__file__)))
from asmlib import Asm

NAME = "adaLN_cond__sliding_block_cached__dense_activation_silu__decode"

WS_EPOCH = 0x0
WS_ARR = 0x400
WS_MG = 0x1000
WS_ML = 0xC000
WS_TAIL = 0x20000
WS_OB = 0x20000
WS_X1 = 0x30000
WS_PA = 0x34000
WS_PY = 0xD4000
WS_TAIL_KB = (0x174000 - 0x20000) // 1024
WS_QP = 0x200000
WS_STAMP = 0x1000000
SENT = 0xFFBFFFBF

C_SYNC, C_QRDY, C_ML, C_O, C_PROG, C_ARR, C_GOK = 0, 4, 8, 12, 16, 20, 24
L_MLX = 64
L_STAT = 128
L_QV = 256
L_OPART = 512
L_HB = 2560
L_ACT = 5120
L_W = 17408
LDS_BYTES = L_W + 120 * 1024


def f2u(x):
    return struct.unpack("<I", struct.pack("<f", x))[0]


class Gen:
    def __init__(self, D=7, R=52, QWAIT=48, trig_mlp=40, trig_wo=60, diag=False, spin=1 << 18, kdelay=180, trig_q=26, t4_sleep=28, trig_gok=72):
        self.D, self.R, self.QWAIT = D, R, QWAIT
        self.trig_mlp, self.trig_wo = trig_mlp, trig_wo
        self.diag = diag
        self.spin = spin
        self.kdelay = kdelay
        self.trig_q = trig_q
        self.t4_sleep = t4_sleep
        self.trig_gok = trig_gok
        self.a = Asm()

    def srd(self, d, lo, nbytes):
        a = self.a
        a(f"s_mov_b32 s{d}, s{lo}")
        a(f"s_mov_b32 s{d+1}, s{lo+1}")
        a(f"s_mov_b32 s{d+2}, {nbytes}")
        a(f"s_mov_b32 s{d+3}, 0x20000")

    def stamp(self, idx):
        if not self.diag:
            return
        a = self.a
        a("s_memrealtime s[76:77]")
        a("s_waitcnt lgkmcnt(0)")
        a(f"s_mov_b32 s{84+idx}, s76")

    def lds_wait(self, ctl, target, sleep=0, vt="v6"):
        a = self.a
        L = a.newlabel("LW")
        Ld = a.newlabel("LWd")
        a(f"s_mov_b32 s7, {self.spin}")
        a.label(L)
        a(f"ds_read_b32 {vt}, v4 offset:{ctl}")
        a("s_waitcnt lgkmcnt(0)")
        a(f"v_cmp_le_u32 vcc, {target}, {vt}")
        a(f"s_cbranch_vccnz {Ld}")
        if sleep:
            a(f"s_sleep {sleep}")
        a("s_sub_u32 s7, s7, 1")
        a("s_cbranch_scc0 " + L)
        a("s_branch L_END")
        a.label(Ld)

    def lds_inc(self, ctl):
        a = self.a
        a("s_mov_b64 exec, 1")
        a(f"ds_add_u32 v4, v5 offset:{ctl}")
        a("s_mov_b64 exec, -1")

    def gsync(self):
        a = self.a
        a("s_waitcnt vmcnt(0) lgkmcnt(0)")
        self.lds_inc(C_SYNC)
        a("s_add_u32 s15, s15, 4")
        self.lds_wait(C_SYNC, "s15")

    def dma(self, srd, stride, sbase, slds, count, ginc, linc, voff="v12"):
        a = self.a
        a(f"s_mov_b32 s80, {sbase}")
        a(f"s_add_u32 s81, {sbase}, {16*stride-1024}")
        a(f"s_add_u32 s82, {sbase}, {4*stride-2048}")
        a(f"s_add_u32 s83, {sbase}, {20*stride-3072}")
        a(f"s_mov_b32 m0, {slds}")
        a(f"s_mov_b32 s14, {count}")
        a(f"s_mov_b32 s13, {ginc}")
        L = a.newlabel("DMA")
        a.label(L)
        for t in range(4):
            a(f"buffer_load_dwordx4 {voff}, {srd}, s{80+t} offen offset:{1024*t} nt lds")
        a(f"s_add_u32 m0, m0, {linc}")
        for t in range(4):
            a(f"s_add_u32 s{80+t}, s{80+t}, s13")
        a("s_sub_u32 s14, s14, 1")
        a("s_cmp_lg_u32 s14, 0")
        a(f"s_cbranch_scc1 {L}")

    def dma_voff(self, stride):
        a = self.a
        a(f"v_mul_u32_u24 v12, {stride}, v11")
        a("v_add_u32 v12, v12, v10")

    def init_barrier(self, helper):
        a = self.a
        if helper:
            L = a.newlabel("IB")
            a("s_cmp_lg_u32 s3, 0")
            a(f"s_cbranch_scc1 {L}")
            a("v_lshlrev_b32 v6, 2, v0")
            a("s_mov_b64 exec, 0xffff")
            a("ds_write_b32 v6, v4")
            a("s_mov_b64 exec, -1")
            a("s_waitcnt lgkmcnt(0)")
            a.label(L)
        a("s_barrier")

    def clear_tail(self):
        a = self.a
        a(f"v_mov_b32 v16, {SENT:#x}")
        a("v_mov_b32 v17, v16")
        a("v_mov_b32 v18, v16")
        a("v_mov_b32 v19, v16")
        a("v_lshlrev_b32 v6, 4, v0")
        a("s_lshl_b32 s8, s2, 2")
        a("s_add_u32 s8, s8, s3")
        a("s_lshl_b32 s9, s8, 10")
        a(f"s_add_u32 s9, s9, {WS_TAIL}")
        a("buffer_store_dwordx4 v[16:19], v6, s[52:55], s9 offen sc1")
        L = a.newlabel("CL")
        a(f"s_cmp_ge_u32 s8, {WS_TAIL_KB-1024}")
        a(f"s_cbranch_scc1 {L}")
        a("s_add_u32 s9, s9, 0x100000")
        a("buffer_store_dwordx4 v[16:19], v6, s[52:55], s9 offen sc1")
        a.label(L)

    def get_tag(self):
        a = self.a
        a("v_readfirstlane_b32 s12, v13")
        a("s_add_u32 s12, s12, 1")
        a("s_mul_i32 s6, s12, 0x9E3779B1")

    def unpack(self, dst_lo, dst_hi, src):
        a = self.a
        a(f"v_lshlrev_b32 {dst_lo}, 16, {src}")
        a(f"v_and_b32 {dst_hi}, 0xffff0000, {src}")

    def row_allreduce(self, v, op="v_add_f32"):
        a = self.a
        for k in (1, 2, 4, 8):
            a(f"{op}_dpp {v}, {v}, {v} row_ror:{k} row_mask:0xf bank_mask:0xf")

    def silu(self, regs, tmp):
        a = self.a
        for r, t in zip(regs, tmp):
            a(f"v_mul_f32 {t}, {f2u(-math.log2(math.e)):#x}, {r}")
        for r, t in zip(regs, tmp):
            a(f"v_exp_f32 {t}, {t}")
        for r, t in zip(regs, tmp):
            a(f"v_add_f32 {t}, 1.0, {t}")
        for r, t in zip(regs, tmp):
            a(f"v_rcp_f32 {t}, {t}")
        for r, t in zip(regs, tmp):
            a(f"v_mul_f32 {r}, {r}, {t}")

    def tr_reads(self, dst0, offs):
        a = self.a
        n = 0
        for k, off in enumerate(offs):
            for hf in range(2):
                o = off + 2048 * hf
                base = "v8"
                if o >= 131072:
                    base, o = "v15", o - 131072
                elif o >= 65536:
                    base, o = "v14", o - 65536
                r = dst0 + 4 * k + 2 * hf
                a(f"ds_read_b64_tr_b16 v[{r}:{r+1}], {base} offset:{o}")
                n += 1
                if n % 12 == 0:
                    a("s_waitcnt lgkmcnt(4)")

    def gemm640(self, afrag, bbuf, nb, acc):
        a = self.a
        issued = 0
        def issue():
            nonlocal issued
            r = bbuf + 4 * (issued % nb)
            a(f"ds_read_b128 v[{r}:{r+3}], v9 offset:{L_ACT + 576*issued}")
            issued += 1
        depth = min(nb, 12)
        for _ in range(depth):
            issue()
        for i in range(20):
            outstanding_after = issued - i - 1
            a(f"s_waitcnt lgkmcnt({outstanding_after})")
            r = bbuf + 4 * (i % nb)
            c = "0" if i == 0 else f"v[{acc}:{acc+3}]"
            a(f"v_mfma_f32_16x16x32_bf16 v[{acc}:{acc+3}], v[{afrag+4*i}:{afrag+4*i+3}], v[{r}:{r+3}], {c}")
            if issued < 20 and (nb > depth or True):
                issue()

    def reduce_poll(self, base_s, nload_full, tagname):
        a = self.a
        L = a.newlabel("RP")
        Lok = a.newlabel("RPok")
        Lnext = a.newlabel("RPn")
        MK = ["s[44:45]", "s[46:47]", "s[48:49]", "s[50:51]"]
        for k in range(4):
            a(f"s_mov_b64 {MK[k]}, {'0xffffff' if (k == 3 and nload_full == 27) else '-1'}")
        a(f"s_mov_b32 s10, {SENT:#x}")
        a(f"s_mov_b32 s7, {self.spin}")
        a.label(L)
        for k in range(4):
            Ls = a.newlabel("RPk")
            a(f"s_mov_b64 exec, {MK[k]}")
            a(f"s_cbranch_execz {Ls}")
            a(f"buffer_load_dwordx4 v[{24+4*k}:{27+4*k}], v7, s[52:55], {base_s} offen offset:{1024*k} sc1")
            a.label(Ls)
        a("s_mov_b64 exec, -1")
        a("s_waitcnt vmcnt(0)")
        a("v_pk_add_f32 v[40:41], v[24:25], v[28:29]")
        a("v_pk_add_f32 v[42:43], v[26:27], v[30:31]")
        a("v_pk_add_f32 v[44:45], v[32:33], v[36:37]")
        a("v_pk_add_f32 v[46:47], v[34:35], v[38:39]")
        a("v_pk_add_f32 v[40:41], v[40:41], v[44:45]")
        a("v_pk_add_f32 v[42:43], v[42:43], v[46:47]")
        a(f"v_cmp_eq_u32 {MK[0]}, s10, v24")
        a(f"v_cmp_eq_u32 {MK[1]}, s10, v28")
        a("v_permlane32_swap_b32 v40, v42")
        a("v_permlane32_swap_b32 v41, v43")
        a("v_pk_add_f32 v[40:41], v[40:41], v[42:43]")
        a(f"v_cmp_eq_u32 {MK[2]}, s10, v32")
        a(f"v_cmp_eq_u32 {MK[3]}, s10, v36")
        a("v_permlane16_swap_b32 v40, v41")
        a("v_add_f32 v40, v40, v41")
        a(f"s_or_b64 s[8:9], {MK[0]}, {MK[1]}")
        a(f"s_or_b64 s[12:13], {MK[2]}, {MK[3]}")
        a("v_add_f32_dpp v40, v40, v40 row_ror:8 row_mask:0xf bank_mask:0xf")
        a("v_cmp_u_f32 vcc, v40, v40")
        a(f"s_cbranch_vccz {Lok}")
        a("s_or_b64 s[8:9], s[8:9], s[12:13]")
        a(f"s_cbranch_scc1 {Lnext}")
        for k in range(4):
            for r in range(1, 4):
                a(f"v_cmp_eq_u32 vcc, s10, v{24+4*k+r}")
                a(f"s_or_b64 {MK[k]}, {MK[k]}, vcc")
            a(f"s_or_b64 s[8:9], s[8:9], {MK[k]}")
        a("s_cmp_eq_u64 s[8:9], 0")
        a(f"s_cbranch_scc1 {Lok}")
        a.label(Lnext)
        a("s_sub_u32 s7, s7, 1")
        a(f"s_cbranch_scc0 {L}")
        a("s_branch L_END")
        a.label(Lok)

    def pack4_rows(self, v, t, dst):
        a = self.a
        a(f"v_mov_b32 {t}, {v}")
        a(f"v_permlane16_swap_b32 {v}, {t}")
        a(f"v_cvt_pk_bf16_f32 v{dst}, {v}, {t}")
        a(f"v_cvt_pk_bf16_f32 v{dst+1}, {v}, {t}")
        a(f"v_permlane32_swap_b32 v{dst}, v{dst+1}")

    def stream(self):
        a = self.a
        D, R = self.D, self.R
        RB = 48
        quad = lambda i: RB + 4 * (i % R)
        a("s_lshl_b32 s8, s2, 20")
        a("s_add_u32 s8, s8, 0xC0000")
        a("s_lshl_b32 s9, s3, 10")
        a("s_sub_u32 s9, s9, 4096")
        a("v_lshlrev_b32 v1, 4, v0")
        a("s_movk_i32 s11, 0x1000")
        a("s_mov_b32 s10, s9")
        a("s_mov_b32 s46, 0x40000")
        a("s_mov_b32 s47, 0x20000")
        a("s_waitcnt lgkmcnt(0)")
        a("s_add_u32 s44, s18, s8")
        a("s_addc_u32 s45, s19, 0")
        if self.diag:
            self.srd(52, 40, self.ws_bytes)

        def load(i):
            srd = "s[44:47]" if i < 64 else "s[48:51]"
            if i == 64:
                a("s_mov_b32 s10, s9")
            r = quad(i)
            a(f"buffer_load_dwordx4 v[{r}:{r+3}], v1, {srd}, s10 offen nt")
            if i != 63 and i != 127:
                a("s_add_u32 s10, s10, s11")
            if i - 64 == self.trig_mlp or i - 64 == self.trig_wo or i == self.trig_q or i == self.trig_gok:
                L = a.newlabel("TR")
                a("s_cmp_lg_u32 s3, 4")
                a(f"s_cbranch_scc1 {L}")
                self.lds_inc(C_PROG)
                a.label(L)

        a("v_mov_b32 v4, 0")
        a("v_mov_b32 v5, 1")
        a("s_sub_u32 s42, s2, 160")
        a(f"s_cmp_lt_u32 s42, {self.kdelay-160}")
        a("s_cbranch_scc0 L_NODELAY")
        a("s_barrier")
        self.lds_wait(C_SYNC, 1, sleep=1)
        a.label("L_NODELAY")
        for i in range(D):
            load(i)
        a("s_add_u32 s48, s20, s8")
        a("s_addc_u32 s49, s21, 0")
        a("s_mov_b32 s50, 0x40000")
        a("s_mov_b32 s51, 0x20000")
        self.srd(52, 40, self.ws_bytes)
        self.stamp(0)
        a(f"s_cmp_lt_u32 s42, {self.kdelay-160}")
        a("s_cbranch_scc1 L_NOBAR")
        self.init_barrier(False)
        a.label("L_NOBAR")
        a("v_and_b32 v2, 15, v0")
        a("v_and_b32 v3, 1, v0")
        a("v_lshlrev_b32 v3, 4, v3")
        a("v_mov_b32 v6, 0xffff")
        a("v_lshlrev_b32 v6, v3, v6")
        a("v_lshrrev_b32 v3, 1, v2")
        for r in range(4):
            a(f"v_cmp_eq_u32 vcc, {r}, v3")
            a(f"v_cndmask_b32 v{8+r}, 0, v6, vcc")
        a("v_lshlrev_b32 v2, 4, v2")
        state = dict(kdone=0, vdone=0, soft=False)

        def qk_group(gi):
            qs = [quad(4 * gi + l) for l in range(4)]
            for r in range(4):
                for l in range(4):
                    c = "0" if r == 0 else f"v{24+l}"
                    a(f"v_dot2_f32_bf16 v{24+l}, v{qs[l]+r}, v{12+r}, {c}")
            a("v_add_f32_dpp v28, v24, v24 row_ror:8 row_mask:0xf bank_mask:0x3")
            a("v_add_f32_dpp v28, v25, v25 row_ror:8 row_mask:0xf bank_mask:0xc")
            a("v_add_f32_dpp v29, v26, v26 row_ror:8 row_mask:0xf bank_mask:0x3")
            a("v_add_f32_dpp v29, v27, v27 row_ror:8 row_mask:0xf bank_mask:0xc")
            a("v_add_f32_dpp v30, v28, v28 row_half_mirror row_mask:0xf bank_mask:0x5")
            a("v_add_f32_dpp v30, v29, v29 row_half_mirror row_mask:0xf bank_mask:0xa")
            a("v_add_f32_dpp v30, v30, v30 quad_perm:[1,0,3,2] row_mask:0xf bank_mask:0xf")
            a(f"v_add_f32_dpp v{32+gi}, v30, v30 quad_perm:[2,3,0,1] row_mask:0xf bank_mask:0xf")

        def bcast4(v, op, dst):
            for k in range(4):
                a(f"v_readlane_b32 s{76+k}, {v}, {16*k}")
            a(f"v_mov_b32 {dst}, s76")
            for k in range(1, 4):
                a(f"{op} {dst}, s{76+k}, {dst}")

        def softmax():
            cs = f2u(128 ** -0.5 * math.log2(math.e))
            a("v_max3_f32 v24, v32, v33, v34")
            for k in range(35, 47, 2):
                a(f"v_max3_f32 v24, v24, v{k}, v{k+1}")
            a("v_max_f32 v24, v24, v47")
            a("v_max_f32_dpp v24, v24, v24 row_ror:4 row_mask:0xf bank_mask:0xf")
            a("v_max_f32_dpp v24, v24, v24 row_ror:8 row_mask:0xf bank_mask:0xf")
            bcast4("v24", "v_max_f32", "v26")
            a(f"s_mov_b32 s13, {cs:#x}")
            a("v_mul_f32 v26, s13, v26")
            for k in range(16):
                a(f"v_fma_f32 v{32+k}, v{32+k}, s13, -v26")
            for k in range(16):
                a(f"v_exp_f32 v{32+k}, v{32+k}")
            a("v_add_f32 v24, v32, v33")
            a("v_add_f32 v25, v34, v35")
            for k in range(4, 16, 2):
                a(f"v_add_f32 v24, v24, v{32+k}")
                a(f"v_add_f32 v25, v25, v{33+k}")
            a("v_add_f32 v24, v24, v25")
            for k in range(16):
                a(f"v_cvt_pk_bf16_f32 v{32+k}, v{32+k}, v{32+k}")
            a("v_add_f32_dpp v24, v24, v24 row_ror:4 row_mask:0xf bank_mask:0xf")
            a("v_add_f32_dpp v24, v24, v24 row_ror:8 row_mask:0xf bank_mask:0xf")
            bcast4("v24", "v_add_f32", "v27")
            a("s_lshl_b32 s8, s3, 3")
            a("v_mov_b32 v3, s8")
            a("s_mov_b64 exec, 1")
            a(f"ds_write_b64 v3, v[26:27] offset:{L_MLX-32}")
            a(f"ds_add_u32 v4, v5 offset:{C_ML}")
            a("s_mov_b64 exec, -1")
            a("v_mov_b32 v31, v26")

        def factor():
            self.lds_wait(C_ML, 4)
            a(f"ds_read_b128 v[24:27], v4 offset:{L_MLX}")
            a(f"ds_read_b128 v[12:15], v4 offset:{L_MLX+16}")
            a("s_waitcnt lgkmcnt(0)")
            a("v_max3_f32 v28, v24, v26, v12")
            a("v_max_f32 v28, v28, v14")
            for r in ("v24", "v26", "v12", "v14", "v31"):
                a(f"v_sub_f32 {r}, {r}, v28")
            for r in ("v24", "v26", "v12", "v14", "v31"):
                a(f"v_exp_f32 {r}, {r}")
            a("v_mul_f32 v28, v24, v25")
            a("v_fmac_f32 v28, v26, v27")
            a("v_fmac_f32 v28, v12, v13")
            a("v_fmac_f32 v28, v14, v15")
            a("v_rcp_f32 v28, v28")
            a("v_mul_f32 v31, v31, v28")

        BANK = [0, 2, 1, 3]
        def build_a(t):
            A = 16 + 4 * (t & 1)
            for r in range(4):
                a(f"v_and_b32_dpp v{A+r}, v{32+(t>>2)}, v{8+r} row_newbcast:{4*BANK[t&3]} row_mask:0xf bank_mask:0xf")

        def pv(t):
            A = 16 + 4 * (t & 1)
            q = quad(64 + t)
            c = "0" if t == 0 else "v[60:63]"
            return A, q

        OACC = self.OACC
        def pv_mfma(t):
            A = 16 + 4 * (t & 1)
            q = quad(64 + t)
            c = "0" if t == 0 else f"v[{OACC}:{OACC+3}]"
            a(f"v_mfma_f32_16x16x32_bf16 v[{OACC}:{OACC+3}], v[{A}:{A+3}], v[{q}:{q+3}], {c}")

        for i in range(D, self.QWAIT):
            a(f"s_waitcnt vmcnt({D-1})")
            load(i)
        self.stamp(1)
        self.lds_wait(C_QRDY, 1)
        a(f"ds_read_b128 v[12:15], v2 offset:{L_QV}")
        a("s_waitcnt lgkmcnt(0)")
        self.stamp(2)
        fact_at = None
        abuilt = 0
        for i in range(self.QWAIT, 128 + D):
            if i < 128 and i >= R:
                need = i - R
                if need < 64:
                    while state["kdone"] <= need:
                        assert state["kdone"] + 3 <= i - D, "ring too small"
                        qk_group(state["kdone"] // 4)
                        state["kdone"] += 4
                else:
                    assert state["vdone"] > need - 64, "ring too small (V)"
            rem = min(127, i - 1) - (i - D)
            a(f"s_waitcnt vmcnt({rem})")
            if i < 128:
                load(i)
            landed = i - D
            budget = 3
            while state["kdone"] < 64 and state["kdone"] + 3 <= landed and budget > 0:
                qk_group(state["kdone"] // 4)
                state["kdone"] += 4
                budget -= 1
            if state["kdone"] == 64 and not state["soft"]:
                softmax()
                state["soft"] = True
                fact_at = i + 8
                self.stamp(3)
                continue
            if state["soft"]:
                if i == fact_at:
                    factor()
                if i == 64 + 44:
                    self.lds_wait(C_GOK, 1)
                budget = 6
                while state["vdone"] < 64 and 64 + state["vdone"] <= landed and budget > 0:
                    t = state["vdone"]
                    if abuilt <= t:
                        build_a(t)
                        abuilt = t + 1
                    pv_mfma(t)
                    state["vdone"] += 1
                    budget -= 1
                    if t + 1 < 64 and abuilt == t + 1:
                        build_a(t + 1)
                        abuilt = t + 2
        assert state["vdone"] == 64
        self.stamp(4)
        a("v_and_b32 v2, 15, v0")
        a("v_lshlrev_b32 v2, 5, v2")
        a("v_and_b32 v3, 16, v0")
        a("s_lshl_b32 s8, s3, 9")
        a("s_sub_u32 s8, s8, 2048")
        a("v_add3_u32 v2, v2, v3, s8")
        a("v_lshlrev_b32 v3, 4, v0")
        a("v_lshlrev_b32 v6, 3, v0")
        a("s_lshl_b32 s8, s5, 11")
        a("s_lshl_b32 s9, s4, 8")
        a("s_add_u32 s8, s8, s9")
        a(f"s_add_u32 s8, s8, {WS_OB}")
        for r in range(4):
            a(f"v_mul_f32 v{24+r}, v31, v{OACC+r}")
        a("s_mov_b32 exec_hi, 0")
        a(f"ds_write_b128 v2, v[24:27] offset:{L_OPART}")
        a("s_mov_b32 exec_lo, 1")
        a(f"ds_add_rtn_u32 v7, v4, v5 offset:{C_O}")
        a("s_mov_b32 exec_lo, -1")
        a("s_waitcnt lgkmcnt(0)")
        a("v_readfirstlane_b32 s9, v7")
        a("s_cmp_lg_u32 s9, 3")
        a("s_cbranch_scc1 L_SDONE")
        for k in range(4):
            a(f"ds_read_b128 v[{32+4*k}:{35+4*k}], v3 offset:{L_OPART+512*k}")
        a("s_waitcnt lgkmcnt(2)")
        a("v_pk_add_f32 v[32:33], v[32:33], v[36:37]")
        a("v_pk_add_f32 v[34:35], v[34:35], v[38:39]")
        a("s_waitcnt lgkmcnt(0)")
        a("v_pk_add_f32 v[40:41], v[40:41], v[44:45]")
        a("v_pk_add_f32 v[42:43], v[42:43], v[46:47]")
        a("v_pk_add_f32 v[32:33], v[32:33], v[40:41]")
        a("v_pk_add_f32 v[34:35], v[34:35], v[42:43]")
        a("v_cvt_pk_bf16_f32 v32, v32, v33")
        a("v_cvt_pk_bf16_f32 v33, v34, v35")
        a("buffer_store_dwordx2 v[32:33], v6, s[52:55], s8 offen sc1")
        a.label("L_SDONE")
        a("s_mov_b64 exec, -1")
        self.stamp(5)
        self.mlp_role("L_END")
        self.ln_consts()
        a("s_branch L_LN")

    def mlp_role(self, notlabel):
        a = self.a
        a("s_cmp_lt_u32 s2, 192")
        a(f"s_cbranch_scc1 {notlabel}")
        a("s_lshr_b32 s8, s2, 3")
        a("s_and_b32 s43, s8, 1")
        a("s_sub_u32 s8, 31, s8")
        a("s_lshr_b32 s8, s8, 1")
        a("s_lshl_b32 s8, s8, 3")
        a("s_and_b32 s42, s2, 7")
        a("s_add_u32 s42, s42, s8")
        a("s_cmp_ge_u32 s42, 27")
        a(f"s_cbranch_scc1 {notlabel}")

    def ln_consts(self):
        a = self.a
        a("v_lshlrev_b32 v7, 6, v0")
        a("s_lshl_b32 s8, s3, 3")
        a(f"s_add_u32 s8, s8, {WS_ML + 10240}")
        for ch in range(2):
            for k in range(3):
                a(f"s_add_u32 s9, s8, {ch*10240 + k*4096}")
                a(f"buffer_load_dwordx2 v[{40+6*ch+2*k}:{41+6*ch+2*k}], v7, s[52:55], s9 offen sc1")
        a("v_lshrrev_b32 v6, 1, v0")
        a("v_mul_u32_u24 v6, 144, v6")
        a("v_and_b32 v7, 1, v0")
        a("v_lshl_add_u32 v6, v7, 3, v6")
        a("s_lshl_b32 s9, s3, 4")
        a("v_add_u32 v6, s9, v6")
        a("v_lshlrev_b32 v7, 3, v0")
        a("s_mul_i32 s11, s3, 1280")
        a(f"s_add_u32 s11, s11, {WS_X1}")
        a("s_waitcnt vmcnt(0)")
        for k in range(6):
            self.unpack(f"v{28+2*k}", f"v{29+2*k}", f"v{40+k}")
            self.unpack(f"v{16+2*k}", f"v{17+2*k}", f"v{46+k}")
        for k in range(12):
            a(f"v_add_f32 v{16+k}, 1.0, v{16+k}")
        for r in (44, 45, 54, 55, 56, 57):
            a(f"v_mov_b32 v{r}, 0")
        a("v_mov_b32 v2, 0x3f80")
        a("v_mov_b32 v3, 1.0")

    def ln_stage(self):
        a = self.a
        a.label("L_LN")
        L0 = a.newlabel("LNL")
        L = a.newlabel("LNP")
        Lok = a.newlabel("LNok")
        MK = ["s[92:93]", "s[94:95]", "s[78:79]"]
        a(f"s_mov_b32 s7, {self.spin}")
        a(f"s_mov_b32 s10, {SENT:#x}")
        a(f"s_mov_b64 {MK[0]}, -1")
        a(f"s_mov_b64 {MK[1]}, -1")
        a("s_mov_b32 s78, -1")
        a("s_mov_b32 s79, 0")
        a("s_mov_b64 exec, 0xffff")
        a.label(L0)
        a("buffer_load_dwordx2 v[40:41], v7, s[52:55], s11 offen sc1")
        a("s_waitcnt vmcnt(0)")
        a("v_cmp_ne_u32 vcc, s10, v40")
        a(f"s_cbranch_vccnz {L}")
        a("s_sub_u32 s7, s7, 1")
        a(f"s_cbranch_scc0 {L0}")
        a("s_branch L_END")
        a.label(L)
        for k in range(3):
            Ls = a.newlabel("LNk")
            a(f"s_mov_b64 exec, {MK[k]}")
            a(f"s_cbranch_execz {Ls}")
            a(f"buffer_load_dwordx2 v[{40+2*k}:{41+2*k}], v7, s[52:55], s11 offen offset:{512*k} sc1")
            a.label(Ls)
        a("s_mov_b64 exec, -1")
        a("s_waitcnt vmcnt(0)")
        a("v_max3_u32 v58, v40, v41, v42")
        a("v_readfirstlane_b32 s8, v40")
        a("v_max3_u32 v59, v43, v44, v45")
        a("v_max_u32 v58, v58, v59")
        a("v_cmp_le_u32 vcc, s10, v58")
        a(f"s_cbranch_vccz {Lok}")
        a("s_mov_b64 s[12:13], 0")
        for k in range(3):
            a(f"v_cmp_eq_u32 {MK[k]}, s10, v{40+2*k}")
            a(f"v_cmp_eq_u32 vcc, s10, v{41+2*k}")
            a(f"s_or_b64 {MK[k]}, {MK[k]}, vcc")
            a(f"s_or_b64 s[12:13], s[12:13], {MK[k]}")
        a("s_cmp_eq_u64 s[12:13], 0")
        a(f"s_cbranch_scc1 {Lok}")
        a("s_sub_u32 s7, s7, 1")
        a(f"s_cbranch_scc0 {L}")
        a("s_branch L_END")
        a.label(Lok)
        self.stamp(6)
        a("s_lshl_b32 s8, s8, 16")
        a("s_xor_b32 s8, s8, 0x80000000")
        for k in range(4):
            a(f"v_dot2_f32_bf16 v{46+2*k}, v{40+k}, v2, s8")
            a(f"v_dot2_f32_bf16 v{47+2*k}, v{40+k}, v3, s8")
        a("s_mov_b32 exec_hi, 0")
        for k in range(4, 6):
            a(f"v_dot2_f32_bf16 v{46+2*k}, v{40+k}, v2, s8")
            a(f"v_dot2_f32_bf16 v{47+2*k}, v{40+k}, v3, s8")
        a("s_mov_b64 exec, -1")
        a("v_pk_add_f32 v[58:59], v[46:47], v[48:49]")
        a("v_pk_mul_f32 v[60:61], v[46:47], v[46:47]")
        a("v_pk_fma_f32 v[60:61], v[48:49], v[48:49], v[60:61]")
        for k in range(2, 6):
            a(f"v_pk_add_f32 v[58:59], v[58:59], v[{46+2*k}:{47+2*k}]")
            a(f"v_pk_fma_f32 v[60:61], v[{46+2*k}:{47+2*k}], v[{46+2*k}:{47+2*k}], v[60:61]")
        a("v_add_f32 v58, v58, v59")
        a("v_add_f32 v59, v60, v61")
        fill = [f"v_pk_mul_f32 v[{46+2*k}:{47+2*k}], v[{46+2*k}:{47+2*k}], v[{16+2*k}:{17+2*k}]" for k in range(6)]
        a(fill.pop())
        a(fill.pop())
        a("v_permlane16_swap_b32 v58, v59")
        a("v_add_f32 v58, v58, v59")
        for k in (1, 2, 4, 8):
            if fill:
                a(fill.pop())
            a(f"v_add_f32_dpp v58, v58, v58 row_ror:{k} row_mask:0xf bank_mask:0xf")
        for k in range(4):
            a(f"v_readlane_b32 s{76+k}, v58, {16*k}")
        a("v_mov_b32 v60, s76")
        a("v_mov_b32 v61, s77")
        a("v_add_f32 v60, s78, v60")
        a("v_add_f32 v61, s79, v61")
        a(f"v_mul_f32 v60, {f2u(-1/640):#x}, v60")
        a(f"v_mul_f32 v61, {f2u(1/640):#x}, v61")
        a("v_fma_f32 v61, -v60, v60, v61")
        a("v_max_f32 v61, 0, v61")
        a(f"v_add_f32 v61, {f2u(1e-5):#x}, v61")
        a("v_rsq_f32 v61, v61")
        for k in range(6):
            a(f"v_pk_fma_f32 v[{46+2*k}:{47+2*k}], v[{16+2*k}:{17+2*k}], v[60:61], v[{46+2*k}:{47+2*k}] op_sel_hi:[1,0,1]")
        for k in range(6):
            a(f"v_pk_fma_f32 v[{46+2*k}:{47+2*k}], v[{46+2*k}:{47+2*k}], v[60:61], v[{28+2*k}:{29+2*k}] op_sel:[0,1,0] op_sel_hi:[1,1,1]")
        for k in range(6):
            a(f"v_cvt_pk_bf16_f32 v{40+k}, v{46+2*k}, v{47+2*k}")
        a(f"ds_write_b64 v6, v[40:41] offset:{L_ACT}")
        a(f"ds_write_b64 v6, v[42:43] offset:{L_ACT + 32*144}")
        a("s_mov_b32 exec_hi, 0")
        a(f"ds_write_b64 v6, v[44:45] offset:{L_ACT + 64*144}")
        a("s_mov_b64 exec, -1")
        a("s_waitcnt lgkmcnt(0)")
        a("s_barrier")
        a("s_cmp_ge_u32 s3, 4")
        a("s_cbranch_scc1 L_END")
        self.gemm640(64, 184, 18, 40)
        self.silu([f"v{40+r}" for r in range(4)], [f"v{44+r}" for r in range(4)])
        a("v_cvt_pk_bf16_f32 v40, v40, v41")
        a("v_cvt_pk_bf16_f32 v41, v42, v43")
        a("s_mov_b32 exec_lo, 0x00ff00ff")
        a("s_mov_b32 exec_hi, 0x00ff00ff")
        a(f"ds_write_b64 v62, v[40:41] offset:{L_HB}")
        a("s_mov_b64 exec, -1")
        a("s_waitcnt lgkmcnt(0)")
        a("s_barrier")
        a(f"ds_read_b128 v[184:187], v9 offset:{L_HB}")
        a(f"ds_read_b128 v[188:191], v9 offset:{L_HB+576}")
        a("s_waitcnt lgkmcnt(1)")
        for blk in range(5):
            A = 144 + 8 * blk
            a(f"v_mfma_f32_16x16x32_bf16 v[{192+4*blk}:{195+4*blk}], v[{A}:{A+3}], v[184:187], 0")
        a("s_waitcnt lgkmcnt(0)")
        for blk in range(5):
            A = 148 + 8 * blk
            a(f"v_mfma_f32_16x16x32_bf16 v[{192+4*blk}:{195+4*blk}], v[{A}:{A+3}], v[188:191], v[{192+4*blk}:{195+4*blk}]")
        a("s_mov_b32 exec_lo, 0x00ff00ff")
        a("s_mov_b32 exec_hi, 0x00ff00ff")
        for blk in range(5):
            a(f"buffer_store_dwordx4 v[{192+4*blk}:{195+4*blk}], v63, s[52:55], s{80+blk} offen sc1") if blk < 4 else \
                a(f"buffer_store_dwordx4 v[{192+4*blk}:{195+4*blk}], v63, s[52:55], s14 offen sc1")
        a("s_mov_b64 exec, -1")
        self.stamp(7)
        a("s_branch L_END")

    def helper(self):
        a = self.a
        a.label("L_HELPER")
        a("s_setprio 2")
        a("v_mov_b32 v4, 0")
        a("v_mov_b32 v5, 1")
        a("v_lshrrev_b32 v1, 4, v0")
        a("v_and_b32 v2, 15, v0")
        a("v_and_b32 v3, 7, v0")
        a("v_lshlrev_b32 v10, 1, v1")
        a("v_xor_b32 v10, v10, v3")
        a("v_lshlrev_b32 v10, 4, v10")
        a("v_lshrrev_b32 v11, 5, v0")
        a("v_lshlrev_b32 v11, 3, v11")
        a("v_bfe_u32 v6, v0, 3, 2")
        a("v_add_u32 v11, v11, v6")
        a("s_mov_b32 s15, 0")
        a("s_waitcnt lgkmcnt(0)")
        self.srd(52, 40, self.ws_bytes)
        a("buffer_load_dword v13, v4, s[52:55], 0 offen sc1")
        self.stamp(0)
        a("s_cmp_ge_u32 s2, 160")
        a("s_cbranch_scc1 L_HI")
        a("s_and_b32 s8, s2, 7")
        a("s_mul_i32 s8, s8, 20")
        a("s_lshr_b32 s9, s2, 3")
        a("s_add_u32 s8, s8, s9")
        a("s_lshr_b32 s42, s8, 5")
        a("s_and_b32 s43, s8, 31")
        self.srd(56, 22, 640 * 8192)
        self.srd(64, 16, 10240)
        a("v_lshrrev_b32 v6, 5, v0")
        a("v_mul_u32_u24 v6, 1280, v6")
        a("v_and_b32 v7, 31, v0")
        a("v_lshl_add_u32 v6, v7, 3, v6")
        a("s_mul_i32 s8, s3, 2560")
        for k in range(5):
            a(f"buffer_load_dwordx2 v[{20+2*k}:{21+2*k}], v6, s[64:67], s8 offen offset:{256*k}")
        a("v_mul_u32_u24 v6, 1280, v3")
        a("v_lshl_add_u32 v6, v1, 4, v6")
        a("s_lshl_b32 s8, s42, 8")
        a("s_lshl_b32 s9, s3, 6")
        a("s_add_u32 s8, s8, s9")
        a("buffer_load_dwordx4 v[52:55], v6, s[64:67], s8 offen")
        self.dma_voff(8192)
        a("s_lshl_b32 s8, s42, 20")
        a("s_lshl_b32 s9, s3, 18")
        a("s_add_u32 s8, s8, s9")
        a("s_lshl_b32 s9, s43, 8")
        a("s_add_u32 s8, s8, s9")
        a("s_lshl_b32 s9, s3, 12")
        a(f"s_add_u32 s9, s9, {L_W}")
        self.dma("s[56:59]", 8192, "s8", "s9", 2, 128, 16384)
        self.init_barrier(True)
        self.common_addrs()
        a("s_waitcnt vmcnt(9)")
        self.get_tag()
        for k in range(10):
            self.unpack(f"v{30+2*k}", f"v{31+2*k}", f"v{20+k}")
        a("v_pk_add_f32 v[20:21], v[30:31], v[32:33]")
        for k in range(2, 10):
            a(f"v_pk_add_f32 v[20:21], v[20:21], v[{30+2*k}:{31+2*k}]")
        a("v_add_f32 v20, v20, v21")
        self.row_allreduce("v20")
        a("v_mov_b32 v21, v20")
        a("v_permlane16_swap_b32 v20, v21")
        a("v_add_f32 v20, v20, v21")
        a(f"v_mul_f32 v22, {f2u(1/640):#x}, v20")
        for k in range(20):
            a(f"v_sub_f32 v{30+k}, v{30+k}, v22")
        a("v_pk_mul_f32 v[20:21], v[30:31], v[30:31]")
        for k in range(1, 10):
            a(f"v_pk_fma_f32 v[20:21], v[{30+2*k}:{31+2*k}], v[{30+2*k}:{31+2*k}], v[20:21]")
        a("v_add_f32 v20, v20, v21")
        self.row_allreduce("v20")
        a("v_mov_b32 v21, v20")
        a("v_permlane16_swap_b32 v20, v21")
        a("v_add_f32 v20, v20, v21")
        a(f"v_mul_f32 v20, {f2u(1/640):#x}, v20")
        a(f"v_add_f32 v20, {f2u(1e-5):#x}, v20")
        a("v_rsq_f32 v23, v20")
        a("v_lshrrev_b32 v6, 5, v0")
        a("v_lshlrev_b32 v6, 3, v6")
        a("s_lshl_b32 s8, s3, 4")
        a("v_add_u32 v6, s8, v6")
        a("s_mov_b32 exec_lo, 1")
        a("s_mov_b32 exec_hi, 1")
        a(f"ds_write_b64 v6, v[22:23] offset:{L_STAT}")
        a("s_mov_b64 exec, -1")
        self.gsync()
        a("v_lshlrev_b32 v6, 3, v3")
        a(f"ds_read_b64 v[22:23], v6 offset:{L_STAT}")
        for k in range(4):
            self.unpack(f"v{30+2*k}", f"v{31+2*k}", f"v{52+k}")
        a("v_lshrrev_b32 v6, 3, v2")
        a("v_mul_u32_u24 v6, 20480, v6")
        a("v_lshl_add_u32 v6, v1, 8, v6")
        a("v_lshl_add_u32 v6, v3, 4, v6")
        a("s_lshl_b32 s8, s42, 12")
        a("s_lshl_b32 s9, s3, 10")
        a("s_add_u32 s8, s8, s9")
        a(f"s_add_u32 s8, s8, {WS_MG}")
        a("s_waitcnt lgkmcnt(0)")
        for k in range(8):
            a(f"v_sub_f32 v{30+k}, v{30+k}, v22")
        for k in range(8):
            a(f"v_mul_f32 v{30+k}, v{30+k}, v23")
        self.stamp(1)
        L = a.newlabel("MGP")
        Lok = a.newlabel("MGok")
        a(f"s_mov_b32 s7, {self.spin}")
        a.label(L)
        a("buffer_load_dwordx4 v[56:59], v6, s[52:55], s8 offen sc1")
        a("buffer_load_dwordx4 v[60:63], v6, s[52:55], s8 offen offset:128 sc1")
        a("s_waitcnt vmcnt(0)")
        for r in (57, 59, 61, 63):
            a(f"v_xor_b32 v{r}, s6, v{r}")
        a("v_or3_b32 v57, v57, v59, v61")
        a("v_or_b32 v57, v57, v63")
        a("v_cmp_ne_u32 vcc, 0, v57")
        a(f"s_cbranch_vccz {Lok}")
        a("s_sleep 4")
        a("s_sub_u32 s7, s7, 1")
        a(f"s_cbranch_scc0 {L}")
        a("s_branch L_END")
        a.label(Lok)
        self.stamp(2)
        for k in range(4):
            a(f"v_mov_b32_dpp v{57+2*k}, v{56+2*k} row_ror:8 row_mask:0xf bank_mask:0xf")
        for k in range(4):
            self.unpack(f"v{40+2*k}", f"v{41+2*k}", f"v{56+2*k}")
            self.unpack(f"v{20+2*k}", f"v{21+2*k}", f"v{57+2*k}")
        for k in range(8):
            a(f"v_add_f32 v{40+k}, v{40+k}, v{30+k}")
        for k in range(8):
            a(f"v_fmac_f32 v{40+k}, v{30+k}, v{20+k}")
        for k in range(4):
            a(f"v_cvt_pk_bf16_f32 v{48+k}, v{40+2*k}, v{41+2*k}")
        a("s_mul_i32 s8, s3, 576")
        a("v_add_u32 v6, s8, v9")
        a("s_mov_b32 exec_lo, 0x00ff00ff")
        a("s_mov_b32 exec_hi, 0x00ff00ff")
        a(f"ds_write_b128 v6, v[48:51] offset:{L_HB}")
        a("s_mov_b64 exec, -1")
        self.tr_reads(64, [L_W + 16384 * blk + 4096 * i for blk in range(2) for i in range(4)])
        self.gsync()
        for i in range(4):
            a(f"ds_read_b128 v[{96+4*i}:{99+4*i}], v9 offset:{L_HB+576*i}")
        a("v_and_b32 v6, 1, v1")
        a("v_mul_u32_u24 v6, 20480, v6")
        a("v_lshrrev_b32 v7, 1, v1")
        a("v_lshl_add_u32 v6, v7, 9, v6")
        a("v_lshl_add_u32 v6, v2, 3, v6")
        a("s_mul_i32 s8, s43, 40960")
        a("s_lshl_b32 s9, s42, 10")
        a("s_add_u32 s8, s8, s9")
        a("s_lshl_b32 s9, s3, 7")
        a("s_add_u32 s8, s8, s9")
        a(f"s_add_u32 s80, s8, {WS_QP}")
        for r in range(1, 4):
            a(f"s_add_u32 s{80+r}, s80, {5120*r}")
        for r in range(4):
            a(f"v_mov_b32 v{33+2*r}, s6")
        a("v_cmp_le_u32 vcc, 32, v0")
        a("s_waitcnt lgkmcnt(0)")
        for i in range(4):
            for blk in range(2):
                A = 64 + 16 * blk + 4 * i
                c = "0" if i == 0 else f"v[{20+4*blk}:{23+4*blk}]"
                a(f"v_mfma_f32_16x16x32_bf16 v[{20+4*blk}:{23+4*blk}], v[{96+4*i}:{99+4*i}], v[{A}:{A+3}], {c}")
        for r in range(4):
            a(f"v_cndmask_b32 v{32+2*r}, v{20+r}, v{24+r}, vcc")
        for r in range(4):
            a(f"buffer_store_dwordx2 v[{32+2*r}:{33+2*r}], v6, s[52:55], s{80+r} offen sc1")
        self.stamp(3)
        a("s_branch L_ARRIVE")

        a.label("L_HI")
        a("s_cmp_ge_u32 s2, 220")
        a("s_cbranch_scc1 L_NOROLE")
        a("s_sub_u32 s42, s2, 160")
        self.srd(56, 34, 640 * 7680)
        self.srd(64, 32, 10240)
        a("v_lshlrev_b32 v6, 3, v0")
        a("s_mul_i32 s8, s3, 2560")
        for k in range(5):
            a(f"buffer_load_dwordx2 v[{20+2*k}:{21+2*k}], v6, s[64:67], s8 offen offset:{512*k}")
        self.dma_voff(7680)
        a(f"s_mul_i32 s8, s3, {160*7680}")
        a("s_lshl_b32 s9, s42, 7")
        a("s_add_u32 s8, s8, s9")
        a("s_mul_i32 s9, s3, 20480")
        a(f"s_add_u32 s9, s9, {L_W}")
        self.dma("s[56:59]", 7680, "s8", "s9", 5, 32 * 7680, 4096)
        self.init_barrier(True)
        self.common_addrs()
        for k in range(5):
            t = f"v{50+k}"
            a(f"v_add_u32 v6, {64*k}, v0")
            a("v_cmp_le_u32 vcc, 160, v6")
            a("v_subrev_u32 v7, 160, v6")
            a("v_cndmask_b32 v6, v6, v7, vcc")
            a("v_cndmask_b32 v7, 0, v5, vcc")
            a(f"v_lshrrev_b32 {t}, 1, v6")
            a(f"v_mul_u32_u24 {t}, 144, {t}")
            a("v_and_b32 v6, 1, v6")
            a(f"v_lshl_add_u32 {t}, v6, 3, {t}")
            a(f"v_lshl_add_u32 {t}, v7, 4, {t}")
            a("s_lshl_b32 s8, s3, 5")
            a(f"v_add_u32 {t}, s8, {t}")
        a("s_waitcnt vmcnt(20)")
        self.get_tag()
        for k in range(10):
            self.unpack(f"v{30+2*k}", f"v{31+2*k}", f"v{20+k}")
        self.silu([f"v{30+k}" for k in range(20)], [f"v{64+k}" for k in range(20)])
        for k in range(10):
            a(f"v_cvt_pk_bf16_f32 v{20+k}, v{30+2*k}, v{31+2*k}")
        for k in range(5):
            a(f"ds_write_b64 v{50+k}, v[{20+2*k}:{21+2*k}] offset:{L_ACT}")
        self.gsync()
        self.stamp(1)
        self.tr_reads(64, [L_W + 4096 * i for i in range(20)])
        a("s_waitcnt lgkmcnt(0)")
        self.gemm640(64, 184, 18, 40)
        a("s_mul_i32 s8, s42, 205")
        a("s_lshr_b32 s8, s8, 11")
        a("s_mul_i32 s9, s8, 10")
        a("s_sub_u32 s9, s42, s9")
        a("s_lshl_b32 s9, s9, 2")
        a("s_add_u32 s9, s9, s3")
        a("v_cvt_pk_bf16_f32 v44, v40, v41")
        a("v_cvt_pk_bf16_f32 v46, v42, v43")
        a("s_mov_b32 exec_lo, 0x00ff00ff")
        a("s_mov_b32 exec_hi, 0x00ff00ff")
        a("s_cmp_ge_u32 s8, 2")
        a("s_cbranch_scc1 L_MODLATE")
        a("v_mov_b32 v45, s6")
        a("v_mov_b32 v47, s6")
        a("v_lshlrev_b32 v6, 7, v1")
        a("v_lshl_add_u32 v6, v2, 4, v6")
        a("s_mul_i32 s8, s8, 20480")
        a("s_lshl_b32 s9, s9, 9")
        a("s_add_u32 s8, s8, s9")
        a(f"s_add_u32 s8, s8, {WS_MG}")
        a("buffer_store_dwordx4 v[44:47], v6, s[52:55], s8 offen sc1")
        a("s_mov_b64 exec, -1")
        self.stamp(3)
        a("s_branch L_ARRIVE")
        a.label("L_MODLATE")
        a("v_mov_b32 v45, v46")
        a("v_lshlrev_b32 v6, 6, v1")
        a("v_lshl_add_u32 v6, v2, 3, v6")
        a("s_mul_i32 s8, s8, 10240")
        a("s_lshl_b32 s9, s9, 8")
        a("s_add_u32 s8, s8, s9")
        a(f"s_add_u32 s8, s8, {WS_ML - 20480}")
        a("buffer_store_dwordx2 v[44:45], v6, s[52:55], s8 offen sc1")
        a("s_mov_b64 exec, -1")
        a("s_branch L_ARRIVE")

        a.label("L_NOROLE")
        self.init_barrier(True)
        self.common_addrs()
        a("s_waitcnt vmcnt(0)")
        self.get_tag()

        a.label("L_ARRIVE")
        self.clear_tail()
        a("s_waitcnt vmcnt(0)")
        a("s_mov_b64 exec, 1")
        a(f"ds_add_rtn_u32 v6, v4, v5 offset:{C_ARR}")
        a("s_waitcnt lgkmcnt(0)")
        a("v_readfirstlane_b32 s8, v6")
        a("s_cmp_lg_u32 s8, 3")
        a("s_cbranch_scc1 L_ARR2")
        a("v_mov_b32 v6, s6")
        a("s_lshl_b32 s8, s2, 2")
        a(f"buffer_store_dword v6, v4, s[52:55], s8 offen offset:{WS_ARR} sc1")
        a.label("L_ARR2")
        a("s_mov_b64 exec, -1")
        a("s_cmp_eq_u32 s3, 1")
        a("s_cbranch_scc1 L_QGATHER")
        a("s_cmp_eq_u32 s3, 0")
        a("s_cbranch_scc0 L_TAILROLE")
        self.lds_wait(C_PROG, 2, sleep=8)
        L = a.newlabel("GP")
        Lok = a.newlabel("GPok")
        a("v_lshlrev_b32 v7, 4, v0")
        a(f"s_mov_b32 s7, {self.spin}")
        a.label(L)
        a(f"buffer_load_dwordx4 v[20:23], v7, s[52:55], 0 offen offset:{WS_ARR} sc1")
        a("s_waitcnt vmcnt(0)")
        for r in range(20, 24):
            a(f"v_xor_b32 v{r}, s6, v{r}")
        a("v_or3_b32 v20, v20, v21, v22")
        a("v_or_b32 v20, v20, v23")
        a("v_cmp_ne_u32 vcc, 0, v20")
        a(f"s_cbranch_vccz {Lok}")
        a("s_sleep 32")
        a("s_sub_u32 s7, s7, 1")
        a(f"s_cbranch_scc0 {L}")
        a("s_branch L_END")
        a.label(Lok)
        self.lds_inc(C_GOK)
        self.stamp(4)
        a("s_cmp_lg_u32 s2, 0")
        a("s_cbranch_scc1 L_TAILROLE")
        a("v_mov_b32 v6, s12")
        a("s_mov_b64 exec, 1")
        a(f"buffer_store_dword v6, v4, s[52:55], 0 offen offset:{WS_EPOCH} sc1")
        a("s_mov_b64 exec, -1")
        a("s_branch L_TAILROLE")

        a.label("L_QGATHER")
        a("v_lshlrev_b32 v6, 4, v0")
        a("s_lshl_b32 s8, s5, 3")
        a("s_add_u32 s8, s8, s4")
        a("s_mul_i32 s8, s8, 5120")
        a(f"s_add_u32 s8, s8, {WS_QP}")
        a("s_add_u32 s9, s8, 4096")
        self.lds_wait(C_PROG, 1, sleep=2, vt="v7")
        L = a.newlabel("QG")
        MK = ["s[44:45]", "s[46:47]", "s[48:49]", "s[50:51]", "s[92:93]"]
        Lok = a.newlabel("QGok")
        for k in range(5):
            a(f"s_mov_b64 {MK[k]}, -1")
        a(f"s_mov_b32 s7, {self.spin}")
        a.label(L)
        for k in range(5):
            Ls = a.newlabel("QGs")
            a(f"s_mov_b64 exec, {MK[k]}")
            a(f"s_cbranch_execz {Ls}")
            if k < 4:
                a(f"buffer_load_dwordx4 v[{20+4*k}:{23+4*k}], v6, s[52:55], s8 offen offset:{1024*k} sc1")
            else:
                a("buffer_load_dwordx4 v[36:39], v6, s[52:55], s9 offen sc1")
            a.label(Ls)
        a("s_mov_b64 exec, -1")
        a("s_waitcnt vmcnt(0)")
        a("s_mov_b64 s[10:11], 0")
        for k in range(5):
            a(f"v_cmp_ne_u32 {MK[k]}, s6, v{21+4*k}")
            a(f"v_cmp_ne_u32 vcc, s6, v{23+4*k}")
            a(f"s_or_b64 {MK[k]}, {MK[k]}, vcc")
            a(f"s_or_b64 s[10:11], s[10:11], {MK[k]}")
        a("s_cmp_eq_u64 s[10:11], 0")
        a(f"s_cbranch_scc1 {Lok}")
        a("s_sleep 2")
        a("s_sub_u32 s7, s7, 1")
        a(f"s_cbranch_scc0 {L}")
        a("s_branch L_END")
        a.label(Lok)
        for k in range(1, 5):
            a(f"v_add_f32 v20, v20, v{20+4*k}")
            a(f"v_add_f32 v22, v22, v{22+4*k}")
        a("v_cvt_pk_bf16_f32 v20, v20, v22")
        a("v_lshlrev_b32 v6, 2, v0")
        a(f"ds_write_b32 v6, v20 offset:{L_QV}")
        self.lds_inc(C_QRDY)
        self.stamp(4)

        a.label("L_TAILROLE")
        a("s_cmp_ge_u32 s2, 160")
        a("s_cbranch_scc1 L_TAILHI")
        self.srd(56, 24, 4096 * 1280)
        self.srd(64, 16, 10240)
        self.srd(68, 36, 10240)
        self.lds_wait(C_GOK, 1, sleep=8)
        a("v_lshrrev_b32 v6, 1, v1")
        a("v_lshlrev_b32 v6, 2, v6")
        a("v_lshl_add_u32 v7, v3, 3, v6")
        a("s_lshl_b32 s8, s2, 6")
        a(f"s_add_u32 s8, s8, {WS_ML}")
        a("s_add_u32 s9, s8, 30720")
        a("buffer_load_dword v49, v7, s[52:55], s8 offen sc1")
        a("buffer_load_dword v50, v7, s[52:55], s9 offen sc1")
        a("v_mul_u32_u24 v51, 1280, v3")
        a("v_add_u32 v7, v51, v6")
        a("s_lshl_b32 s42, s2, 3")
        a("buffer_load_dword v48, v7, s[64:67], s42 offen")
        a("buffer_load_dword v52, v7, s[68:71], s42 offen")
        a("v_and_b32 v6, 1, v1")
        a("v_lshlrev_b32 v6, 4, v6")
        a("v_sub_u32 v6, 16, v6")
        self.dma_voff(1280)
        a("s_waitcnt vmcnt(0)")
        for r in (48, 49, 50):
            a(f"v_lshlrev_b32 v{r}, v6, v{r}")
            a(f"v_and_b32 v{r}, 0xffff0000, v{r}")
        for r in range(36, 40):
            a(f"v_mov_b32 v{r}, 0")
        a(f"s_mul_i32 s8, s5, {128*1280}")
        a(f"s_mul_i32 s9, s3, {32*1280}")
        a("s_add_u32 s8, s8, s9")
        a("s_lshl_b32 s9, s4, 8")
        a("s_add_u32 s8, s8, s9")
        a("s_lshl_b32 s9, s3, 12")
        a(f"s_add_u32 s9, s9, {L_W + 32768}")
        self.lds_wait(C_PROG, 4, sleep=2)
        self.dma("s[56:59]", 1280, "s8", "s9", 2, 128, 16384)
        a("v_mul_u32_u24 v53, 144, v2")
        a("v_lshl_add_u32 v53, v1, 4, v53")
        a("s_lshl_b32 s9, s3, 5")
        a("v_add_u32 v53, s9, v53")
        a("v_lshlrev_b32 v54, 12, v1")
        a("v_lshl_add_u32 v54, v2, 4, v54")
        a("v_lshlrev_b32 v7, 4, v0")
        a("s_lshl_b32 s11, s5, 11")
        a("s_lshl_b32 s9, s3, 9")
        a("s_add_u32 s11, s11, s9")
        a(f"s_add_u32 s11, s11, {WS_OB}")
        a("s_lshl_b32 s80, s4, 17")
        a("s_lshl_b32 s9, s3, 14")
        a("s_add_u32 s80, s80, s9")
        a("s_lshl_b32 s9, s5, 7")
        a("s_add_u32 s80, s80, s9")
        a(f"s_add_u32 s80, s80, {WS_PA}")
        a("s_add_u32 s81, s80, 0x10000")
        a("s_lshl_b32 s82, s2, 12")
        a(f"s_add_u32 s83, s82, {WS_PY}")
        a(f"s_add_u32 s82, s82, {WS_PA}")
        a(f"s_add_u32 s43, s42, {WS_X1}")
        self.gsync()
        self.tr_reads(64, [L_W + 32768 + 16384 * blk + 4096 * i for blk in range(2) for i in range(4)])
        a("s_waitcnt lgkmcnt(0)")
        self.stamp(5)
        self.lds_wait(C_O, 1)
        L = a.newlabel("OBP")
        Lok = a.newlabel("OBok")
        a(f"s_mov_b32 s7, {self.spin}")
        a(f"s_mov_b32 s10, {SENT:#x}")
        a("s_mov_b32 exec_hi, 0")
        a.label(L)
        a("buffer_load_dwordx4 v[96:99], v7, s[52:55], s11 offen sc1")
        a("s_waitcnt vmcnt(0)")
        a("v_max3_u32 v100, v96, v97, v98")
        a("v_max_u32 v100, v100, v99")
        a("v_cmp_le_u32 vcc, s10, v100")
        a(f"s_cbranch_vccz {Lok}")
        a("v_cmp_eq_u32 s[8:9], s10, v96")
        for r in range(97, 100):
            a(f"v_cmp_eq_u32 vcc, s10, v{r}")
            a("s_or_b64 s[8:9], s[8:9], vcc")
        a("s_cmp_eq_u64 s[8:9], 0")
        a(f"s_cbranch_scc1 {Lok}")
        a("s_mov_b64 exec, s[8:9]")
        a("s_sub_u32 s7, s7, 1")
        a(f"s_cbranch_scc0 {L}")
        a("s_branch L_END")
        a.label(Lok)
        a("s_mov_b32 exec_lo, -1")
        a(f"ds_write_b128 v53, v[96:99] offset:{L_HB}")
        a("s_mov_b32 exec_hi, -1")
        a("s_waitcnt lgkmcnt(0)")
        a("s_barrier")
        for i in range(4):
            a(f"ds_read_b128 v[{96+4*i}:{99+4*i}], v9 offset:{L_HB+576*i}")
        for i in range(4):
            a(f"s_waitcnt lgkmcnt({3-i})")
            for blk in range(2):
                A = 64 + 16 * blk + 4 * i
                c = "0" if i == 0 else f"v[{112+4*blk}:{115+4*blk}]"
                a(f"v_mfma_f32_16x16x32_bf16 v[{112+4*blk}:{115+4*blk}], v[{A}:{A+3}], v[{96+4*i}:{99+4*i}], {c}")
        a("s_mov_b32 exec_lo, 0x00ff00ff")
        a("s_mov_b32 exec_hi, 0x00ff00ff")
        a("buffer_store_dwordx4 v[112:115], v54, s[52:55], s80 offen sc1")
        a("buffer_store_dwordx4 v[116:119], v54, s[52:55], s81 offen sc1")
        a("s_mov_b64 exec, -1")
        self.stamp(6)
        a("s_cmp_lg_u32 s3, 0")
        a("s_cbranch_scc1 L_END")
        self.reduce_poll("s82", 32, "T2")
        a("v_fma_f32 v40, v49, v40, v48")
        a("v_mov_b32 v48, v40")
        self.pack4_rows("v40", "v41", 42)
        a("s_mov_b64 exec, 0xff")
        a("buffer_store_dwordx2 v[42:43], v51, s[52:55], s43 offen sc1")
        a("s_mov_b64 exec, -1")
        self.stamp(7)
        a("v_cvt_pk_bf16_f32 v48, v48, v48")
        a("v_and_b32 v48, 0xffff0000, v48")
        for r in range(36, 40):
            a(f"v_mov_b32 v{r}, 0")
        if self.t4_sleep:
            a(f"s_sleep {self.t4_sleep}")
        self.reduce_poll("s83", 27, "T4")
        a("v_fma_f32 v40, v50, v40, v48")
        self.pack4_rows("v40", "v41", 42)
        a("s_mov_b64 exec, 0xff")
        a("buffer_store_dwordx2 v[42:43], v51, s[68:71], s42 offen")
        a("s_mov_b64 exec, -1")
        self.stamp(3)
        a("s_branch L_END")

        a.label("L_TAILHI")
        self.mlp_role("L_END")
        self.srd(56, 28, 640 * 3456)
        self.srd(60, 30, 1728 * 1280)
        self.lds_wait(C_GOK, 1, sleep=8)
        self.lds_wait(C_PROG, 3, sleep=2)
        self.dma_voff(3456)
        a(f"s_mul_i32 s8, s3, {160*3456}")
        a("s_lshl_b32 s9, s42, 7")
        a("s_add_u32 s8, s8, s9")
        a("s_mul_i32 s9, s3, 20480")
        a(f"s_add_u32 s9, s9, {L_W}")
        self.dma("s[56:59]", 3456, "s8", "s9", 5, 32 * 3456, 4096)
        self.dma_voff(1280)
        a("s_and_b32 s10, s3, 1")
        a("s_lshr_b32 s11, s3, 1")
        a(f"s_mul_i32 s8, s42, {64*1280}")
        a(f"s_mul_i32 s9, s10, {32*1280}")
        a("s_add_u32 s8, s8, s9")
        a("s_mul_i32 s9, s43, 640")
        a("s_add_u32 s8, s8, s9")
        a("s_lshl_b32 s9, s11, 7")
        a("s_add_u32 s8, s8, s9")
        a("s_lshl_b32 s9, s11, 13")
        a("s_lshl_b32 s10, s10, 12")
        a("s_add_u32 s9, s9, s10")
        a(f"s_add_u32 s9, s9, {L_W + 81920}")
        a("s_sub_u32 s11, 3, s11")
        self.dma("s[60:63]", 1280, "s8", "s9", "s11", 256, 16384)
        a("v_lshrrev_b32 v62, 1, v1")
        a("v_mul_u32_u24 v62, 144, v62")
        a("v_and_b32 v6, 1, v1")
        a("v_lshl_add_u32 v62, v6, 3, v62")
        a("v_lshl_add_u32 v62, v2, 4, v62")
        a("s_mul_i32 s8, s3, 288")
        a("v_add_u32 v62, s8, v62")
        a("v_lshlrev_b32 v63, 12, v1")
        a("v_lshl_add_u32 v63, v2, 4, v63")
        self.gsync()
        self.tr_reads(64, [L_W + 4096 * i for i in range(20)] + [L_W + 81920 + 8192 * blk + 4096 * i for blk in range(5) for i in range(2)])
        a(f"s_mul_i32 s80, s43, {80*4096}")
        a("s_lshl_b32 s9, s3, 14")
        a("s_add_u32 s80, s80, s9")
        a("s_lshl_b32 s9, s42, 7")
        a("s_add_u32 s80, s80, s9")
        a(f"s_add_u32 s80, s80, {WS_PY}")
        for k in range(1, 4):
            a(f"s_add_u32 s{80+k}, s80, {k*0x10000}")
        a("s_add_u32 s14, s80, 0x40000")
        self.ln_consts()
        a("s_waitcnt lgkmcnt(0)")
        self.stamp(5)
        self.ln_stage()

    def common_addrs(self):
        a = self.a
        a("v_lshrrev_b32 v6, 2, v2")
        a("v_lshl_add_u32 v8, v1, 2, v6")
        a("v_bfe_u32 v7, v8, 1, 2")
        a("v_xor_b32 v7, s3, v7")
        a("v_lshlrev_b32 v8, 7, v8")
        a("v_lshl_add_u32 v8, v7, 5, v8")
        a("v_and_b32 v6, 3, v0")
        a("v_lshl_add_u32 v8, v6, 3, v8")
        a("v_add_u32 v14, 0x10000, v8")
        a("v_add_u32 v15, 0x20000, v8")
        a("v_mul_u32_u24 v9, 144, v1")
        a("v_lshl_add_u32 v9, v3, 4, v9")

    def build(self):
        a = self.a
        self.ws_bytes = 0x2000000 if self.diag else 0x400000
        self.OACC = 4 * 0 + 0
        self.R = min(self.R, 51)
        self.OACC = 48 + 4 * self.R
        hdr = open(os.path.join(os.path.dirname(os.path.abspath(__file__)), "header.txt")).read().rstrip("\n")
        a.raw(hdr)
        a.raw(f"; @launch grid=(256,1,1) block=(512,1,1) lds={LDS_BYTES}")
        a.raw('.amdgcn_target "amdgcn-amd-amdhsa--gfx950"')
        a.raw(".text")
        a.raw(f".globl {NAME}_kernel")
        a.raw(".p2align 8")
        a.raw(f".type {NAME}_kernel,@function")
        a.label(f"{NAME}_kernel")
        a("s_cmp_ge_u32 s2, 256")
        a("s_cbranch_scc1 L_EXIT")
        a("s_load_dwordx16 s[16:31], s[0:1], 0")
        a("s_load_dwordx8 s[32:39], s[0:1], 64")
        a("s_load_dwordx2 s[40:41], s[0:1], 96")
        a("v_lshrrev_b32 v1, 6, v0")
        a("v_and_b32 v0, 63, v0")
        a("v_readfirstlane_b32 s3, v1")
        a("s_lshr_b32 s4, s2, 5")
        a("s_and_b32 s5, s2, 31")
        if self.diag:
            for k in range(8):
                a(f"s_mov_b32 s{84+k}, 0")
        a("s_cmp_lt_u32 s3, 4")
        a("s_cbranch_scc1 L_HELPER")
        self.stream()
        self.helper()
        a.label("L_END")
        if self.diag:
            a("s_mov_b64 exec, -1")
            a("s_lshl_b32 s8, s2, 3")
            a("s_add_u32 s8, s8, s3")
            a("s_lshl_b32 s8, s8, 5")
            a(f"s_add_u32 s8, s8, {WS_STAMP}")
            for k in range(8):
                a(f"v_mov_b32 v{16+k}, s{84+k}")
            a("v_mov_b32 v4, 0")
            a("s_mov_b64 exec, 1")
            a("buffer_store_dwordx4 v[16:19], v4, s[52:55], s8 offen")
            a("buffer_store_dwordx4 v[20:23], v4, s[52:55], s8 offen offset:16")
        a.label("L_EXIT")
        a("s_endpgm")
        a.raw('.section .rodata,"a"')
        a.raw(".p2align 6")
        a.raw(f".amdhsa_kernel {NAME}_kernel")
        a.raw("  .amdhsa_next_free_vgpr 256")
        a.raw("  .amdhsa_next_free_sgpr 96")
        a.raw("  .amdhsa_accum_offset 256")
        a.raw("  .amdhsa_group_segment_fixed_size 0")
        a.raw("  .amdhsa_kernarg_size 104")
        a.raw("  .amdhsa_user_sgpr_count 2")
        a.raw("  .amdhsa_user_sgpr_kernarg_segment_ptr 1")
        a.raw("  .amdhsa_system_sgpr_workgroup_id_x 1")
        a.raw("  .amdhsa_float_denorm_mode_32 3")
        a.raw(".end_amdhsa_kernel")
        return a.text()


if __name__ == "__main__":
    import argparse
    ap = argparse.ArgumentParser()
    ap.add_argument("-o", default=f"cdna_kernels/{NAME}.s")
    ap.add_argument("--diag", action="store_true")
    ap.add_argument("--set", action="append", default=[])
    args = ap.parse_args()
    kw = {}
    for s in args.set:
        k, v = s.split("=")
        kw[k] = int(v, 0)
    g = Gen(diag=args.diag, **kw)
    open(args.o, "w").write(g.build())
    print("wrote", args.o, "auto nops:", g.a.auto_nops)
```

```python
import sys, os, math, struct
sys.path.insert(0, os.path.dirname(os.path.abspath(__file__)))
from asmlib import Asm

NAME = "adaLN_cond__sliding_block_cached__dense_activation_silu__decode"

WS_EPOCH = 0x0
WS_ARR = 0x400
WS_MG = 0x1000
WS_ML = 0xC000
WS_TAIL = 0x20000
WS_OB = 0x20000
WS_X1 = 0x30000
WS_PA = 0x34000
WS_PY = 0xD4000
WS_TAIL_KB = (0x174000 - 0x20000) // 1024
WS_QP = 0x200000
WS_STAMP = 0x1000000
SENT = 0xFFBFFFBF

C_SYNC, C_QRDY, C_ML, C_O, C_PROG, C_ARR, C_GOK = 0, 4, 8, 12, 16, 20, 24
L_MLX = 64
L_STAT = 128
L_QV = 256
L_OPART = 512
L_HB = 2560
L_ACT = 5120
L_W = 17408
LDS_BYTES = L_W + 120 * 1024


def f2u(x):
    return struct.unpack("<I", struct.pack("<f", x))[0]


class Gen:
    def __init__(self, D=7, R=52, QWAIT=48, trig_mlp=40, trig_wo=60, diag=False, spin=1 << 18, kdelay=180, trig_q=26, t4_sleep=28, trig_gok=72, dbgwg=0):
        self.D, self.R, self.QWAIT = D, R, QWAIT
        self.trig_mlp, self.trig_wo = trig_mlp, trig_wo
        self.diag = diag
        self.spin = spin
        self.kdelay = kdelay
        self.trig_q = trig_q
        self.t4_sleep = t4_sleep
        self.trig_gok = trig_gok
        self.dbgwg = dbgwg
        self.a = Asm()

    def srd(self, d, lo, nbytes):
        a = self.a
        a(f"s_mov_b32 s{d}, s{lo}")
        a(f"s_mov_b32 s{d+1}, s{lo+1}")
        a(f"s_mov_b32 s{d+2}, {nbytes}")
        a(f"s_mov_b32 s{d+3}, 0x20000")

    def stamp(self, idx):
        if not self.diag:
            return
        a = self.a
        a("s_memrealtime s[76:77]")
        a("s_waitcnt lgkmcnt(0)")
        a(f"s_mov_b32 s{84+idx}, s76")

    def lds_wait(self, ctl, target, sleep=0, vt="v6"):
        a = self.a
        L = a.newlabel("LW")
        Ld = a.newlabel("LWd")
        a(f"s_mov_b32 s7, {self.spin}")
        a.label(L)
        a(f"ds_read_b32 {vt}, v4 offset:{ctl}")
        a("s_waitcnt lgkmcnt(0)")
        a(f"v_cmp_le_u32 vcc, {target}, {vt}")
        a(f"s_cbranch_vccnz {Ld}")
        if sleep:
            a(f"s_sleep {sleep}")
        a("s_sub_u32 s7, s7, 1")
        a("s_cbranch_scc0 " + L)
        a("s_branch L_END")
        a.label(Ld)

    def lds_inc(self, ctl):
        a = self.a
        a("s_mov_b64 exec, 1")
        a(f"ds_add_u32 v4, v5 offset:{ctl}")
        a("s_mov_b64 exec, -1")

    def gsync(self):
        a = self.a
        a("s_waitcnt vmcnt(0) lgkmcnt(0)")
        self.lds_inc(C_SYNC)
        a("s_add_u32 s15, s15, 4")
        self.lds_wait(C_SYNC, "s15")

    def dma(self, srd, stride, sbase, slds, count, ginc, linc, voff="v12"):
        a = self.a
        a(f"s_mov_b32 s80, {sbase}")
        a(f"s_add_u32 s81, {sbase}, {16*stride-1024}")
        a(f"s_add_u32 s82, {sbase}, {4*stride-2048}")
        a(f"s_add_u32 s83, {sbase}, {20*stride-3072}")
        a(f"s_mov_b32 m0, {slds}")
        a(f"s_mov_b32 s14, {count}")
        a(f"s_mov_b32 s13, {ginc}")
        L = a.newlabel("DMA")
        a.label(L)
        for t in range(4):
            a(f"buffer_load_dwordx4 {voff}, {srd}, s{80+t} offen offset:{1024*t} nt lds")
        a(f"s_add_u32 m0, m0, {linc}")
        for t in range(4):
            a(f"s_add_u32 s{80+t}, s{80+t}, s13")
        a("s_sub_u32 s14, s14, 1")
        a("s_cmp_lg_u32 s14, 0")
        a(f"s_cbranch_scc1 {L}")

    def dma_voff(self, stride):
        a = self.a
        a(f"v_mul_u32_u24 v12, {stride}, v11")
        a("v_add_u32 v12, v12, v10")

    def init_barrier(self, helper):
        a = self.a
        if helper:
            L = a.newlabel("IB")
            a("s_cmp_lg_u32 s3, 0")
            a(f"s_cbranch_scc1 {L}")
            a("v_lshlrev_b32 v6, 2, v0")
            a("s_mov_b64 exec, 0xffff")
            a("ds_write_b32 v6, v4")
            a("s_mov_b64 exec, -1")
            a("s_waitcnt lgkmcnt(0)")
            a.label(L)
        a("s_barrier")

    def clear_tail(self):
        a = self.a
        a(f"v_mov_b32 v16, {SENT:#x}")
        a("v_mov_b32 v17, v16")
        a("v_mov_b32 v18, v16")
        a("v_mov_b32 v19, v16")
        a("v_lshlrev_b32 v6, 4, v0")
        a("s_lshl_b32 s8, s2, 2")
        a("s_add_u32 s8, s8, s3")
        a("s_lshl_b32 s9, s8, 10")
        a(f"s_add_u32 s9, s9, {WS_TAIL}")
        a("buffer_store_dwordx4 v[16:19], v6, s[52:55], s9 offen sc1")
        L = a.newlabel("CL")
        a(f"s_cmp_ge_u32 s8, {WS_TAIL_KB-1024}")
        a(f"s_cbranch_scc1 {L}")
        a("s_add_u32 s9, s9, 0x100000")
        a("buffer_store_dwordx4 v[16:19], v6, s[52:55], s9 offen sc1")
        a.label(L)

    def get_tag(self):
        a = self.a
        a("v_readfirstlane_b32 s12, v13")
        a("s_add_u32 s12, s12, 1")
        a("s_mul_i32 s6, s12, 0x9E3779B1")

    def unpack(self, dst_lo, dst_hi, src):
        a = self.a
        a(f"v_lshlrev_b32 {dst_lo}, 16, {src}")
        a(f"v_and_b32 {dst_hi}, 0xffff0000, {src}")

    def row_allreduce(self, v, op="v_add_f32"):
        a = self.a
        for k in (1, 2, 4, 8):
            a(f"{op}_dpp {v}, {v}, {v} row_ror:{k} row_mask:0xf bank_mask:0xf")

    def silu(self, regs, tmp):
        a = self.a
        for r, t in zip(regs, tmp):
            a(f"v_mul_f32 {t}, {f2u(-math.log2(math.e)):#x}, {r}")
        for r, t in zip(regs, tmp):
            a(f"v_exp_f32 {t}, {t}")
        for r, t in zip(regs, tmp):
            a(f"v_add_f32 {t}, 1.0, {t}")
        for r, t in zip(regs, tmp):
            a(f"v_rcp_f32 {t}, {t}")
        for r, t in zip(regs, tmp):
            a(f"v_mul_f32 {r}, {r}, {t}")

    def tr_reads(self, dst0, offs):
        a = self.a
        n = 0
        for k, off in enumerate(offs):
            for hf in range(2):
                o = off + 2048 * hf
                base = "v8"
                if o >= 131072:
                    base, o = "v15", o - 131072
                elif o >= 65536:
                    base, o = "v14", o - 65536
                r = dst0 + 4 * k + 2 * hf
                a(f"ds_read_b64_tr_b16 v[{r}:{r+1}], {base} offset:{o}")
                n += 1
                if n % 12 == 0:
                    a("s_waitcnt lgkmcnt(4)")

    def gemm640(self, afrag, bbuf, nb, acc):
        a = self.a
        issued = 0
        def issue():
            nonlocal issued
            r = bbuf + 4 * (issued % nb)
            a(f"ds_read_b128 v[{r}:{r+3}], v9 offset:{L_ACT + 576*issued}")
            issued += 1
        depth = min(nb, 12)
        for _ in range(depth):
            issue()
        for i in range(20):
            outstanding_after = issued - i - 1
            a(f"s_waitcnt lgkmcnt({outstanding_after})")
            r = bbuf + 4 * (i % nb)
            c = "0" if i == 0 else f"v[{acc}:{acc+3}]"
            a(f"v_mfma_f32_16x16x32_bf16 v[{acc}:{acc+3}], v[{afrag+4*i}:{afrag+4*i+3}], v[{r}:{r+3}], {c}")
            if issued < 20 and (nb > depth or True):
                issue()

    def reduce_poll(self, base_s, nload_full, tagname):
        a = self.a
        L = a.newlabel("RP")
        Lok = a.newlabel("RPok")
        Lnext = a.newlabel("RPn")
        MK = ["s[44:45]", "s[46:47]", "s[48:49]", "s[50:51]"]
        for k in range(4):
            a(f"s_mov_b64 {MK[k]}, {'0xffffff' if (k == 3 and nload_full == 27) else '-1'}")
        a(f"s_mov_b32 s10, {SENT:#x}")
        a(f"s_mov_b32 s7, {self.spin}")
        a.label(L)
        for k in range(4):
            Ls = a.newlabel("RPk")
            a(f"s_mov_b64 exec, {MK[k]}")
            a(f"s_cbranch_execz {Ls}")
            a(f"buffer_load_dwordx4 v[{24+4*k}:{27+4*k}], v7, s[52:55], {base_s} offen offset:{1024*k} sc1")
            a.label(Ls)
        a("s_mov_b64 exec, -1")
        a("s_waitcnt vmcnt(0)")
        a("v_pk_add_f32 v[40:41], v[24:25], v[28:29]")
        a("v_pk_add_f32 v[42:43], v[26:27], v[30:31]")
        a("v_pk_add_f32 v[44:45], v[32:33], v[36:37]")
        a("v_pk_add_f32 v[46:47], v[34:35], v[38:39]")
        a("v_pk_add_f32 v[40:41], v[40:41], v[44:45]")
        a("v_pk_add_f32 v[42:43], v[42:43], v[46:47]")
        a(f"v_cmp_eq_u32 {MK[0]}, s10, v24")
        a(f"v_cmp_eq_u32 {MK[1]}, s10, v28")
        a("v_permlane32_swap_b32 v40, v42")
        a("v_permlane32_swap_b32 v41, v43")
        a("v_pk_add_f32 v[40:41], v[40:41], v[42:43]")
        a(f"v_cmp_eq_u32 {MK[2]}, s10, v32")
        a(f"v_cmp_eq_u32 {MK[3]}, s10, v36")
        a("v_permlane16_swap_b32 v40, v41")
        a("v_add_f32 v40, v40, v41")
        a(f"s_or_b64 s[8:9], {MK[0]}, {MK[1]}")
        a(f"s_or_b64 s[12:13], {MK[2]}, {MK[3]}")
        a("v_add_f32_dpp v40, v40, v40 row_ror:8 row_mask:0xf bank_mask:0xf")
        a("v_cmp_u_f32 vcc, v40, v40")
        a(f"s_cbranch_vccz {Lok}")
        a("s_or_b64 s[8:9], s[8:9], s[12:13]")
        a(f"s_cbranch_scc1 {Lnext}")
        for k in range(4):
            for r in range(1, 4):
                a(f"v_cmp_eq_u32 vcc, s10, v{24+4*k+r}")
                a(f"s_or_b64 {MK[k]}, {MK[k]}, vcc")
            a(f"s_or_b64 s[8:9], s[8:9], {MK[k]}")
        a("s_cmp_eq_u64 s[8:9], 0")
        a(f"s_cbranch_scc1 {Lok}")
        a.label(Lnext)
        a("s_sub_u32 s7, s7, 1")
        a(f"s_cbranch_scc0 {L}")
        a("s_branch L_END")
        a.label(Lok)

    def pack4_rows(self, v, t, dst):
        a = self.a
        a(f"v_mov_b32 {t}, {v}")
        a(f"v_permlane16_swap_b32 {v}, {t}")
        a(f"v_cvt_pk_bf16_f32 v{dst}, {v}, {t}")
        a(f"v_cvt_pk_bf16_f32 v{dst+1}, {v}, {t}")
        a(f"v_permlane32_swap_b32 v{dst}, v{dst+1}")

    def stream(self):
        a = self.a
        D, R = self.D, self.R
        RB = 48
        quad = lambda i: RB + 4 * (i % R)
        a("s_lshl_b32 s8, s2, 20")
        a("s_add_u32 s8, s8, 0xC0000")
        a("s_lshl_b32 s9, s3, 10")
        a("s_sub_u32 s9, s9, 4096")
        a("v_lshlrev_b32 v1, 4, v0")
        a("s_movk_i32 s11, 0x1000")
        a("s_mov_b32 s10, s9")
        a("s_mov_b32 s46, 0x40000")
        a("s_mov_b32 s47, 0x20000")
        a("s_waitcnt lgkmcnt(0)")
        a("s_add_u32 s44, s18, s8")
        a("s_addc_u32 s45, s19, 0")
        if self.diag:
            self.srd(52, 40, self.ws_bytes)

        def load(i):
            srd = "s[44:47]" if i < 64 else "s[48:51]"
            if i == 64:
                a("s_mov_b32 s10, s9")
            r = quad(i)
            a(f"buffer_load_dwordx4 v[{r}:{r+3}], v1, {srd}, s10 offen nt")
            if i != 63 and i != 127:
                a("s_add_u32 s10, s10, s11")
            if i - 64 == self.trig_mlp or i - 64 == self.trig_wo or i == self.trig_q or i == self.trig_gok:
                L = a.newlabel("TR")
                a("s_cmp_lg_u32 s3, 4")
                a(f"s_cbranch_scc1 {L}")
                self.lds_inc(C_PROG)
                a.label(L)

        a("v_mov_b32 v4, 0")
        a("v_mov_b32 v5, 1")
        a("s_sub_u32 s42, s2, 160")
        a(f"s_cmp_lt_u32 s42, {self.kdelay-160}")
        a("s_cbranch_scc0 L_NODELAY")
        a("s_barrier")
        self.lds_wait(C_SYNC, 1, sleep=1)
        a.label("L_NODELAY")
        for i in range(D):
            load(i)
        a("s_add_u32 s48, s20, s8")
        a("s_addc_u32 s49, s21, 0")
        a("s_mov_b32 s50, 0x40000")
        a("s_mov_b32 s51, 0x20000")
        self.srd(52, 40, self.ws_bytes)
        self.stamp(0)
        a(f"s_cmp_lt_u32 s42, {self.kdelay-160}")
        a("s_cbranch_scc1 L_NOBAR")
        self.init_barrier(False)
        a.label("L_NOBAR")
        a("v_and_b32 v2, 15, v0")
        a("v_and_b32 v3, 1, v0")
        a("v_lshlrev_b32 v3, 4, v3")
        a("v_mov_b32 v6, 0xffff")
        a("v_lshlrev_b32 v6, v3, v6")
        a("v_lshrrev_b32 v3, 1, v2")
        for r in range(4):
            a(f"v_cmp_eq_u32 vcc, {r}, v3")
            a(f"v_cndmask_b32 v{8+r}, 0, v6, vcc")
        a("v_lshlrev_b32 v2, 4, v2")
        state = dict(kdone=0, vdone=0, soft=False)

        def qk_group(gi):
            qs = [quad(4 * gi + l) for l in range(4)]
            for r in range(4):
                for l in range(4):
                    c = "0" if r == 0 else f"v{24+l}"
                    a(f"v_dot2_f32_bf16 v{24+l}, v{qs[l]+r}, v{12+r}, {c}")
            a("v_add_f32_dpp v28, v24, v24 row_ror:8 row_mask:0xf bank_mask:0x3")
            a("v_add_f32_dpp v28, v25, v25 row_ror:8 row_mask:0xf bank_mask:0xc")
            a("v_add_f32_dpp v29, v26, v26 row_ror:8 row_mask:0xf bank_mask:0x3")
            a("v_add_f32_dpp v29, v27, v27 row_ror:8 row_mask:0xf bank_mask:0xc")
            a("v_add_f32_dpp v30, v28, v28 row_half_mirror row_mask:0xf bank_mask:0x5")
            a("v_add_f32_dpp v30, v29, v29 row_half_mirror row_mask:0xf bank_mask:0xa")
            a("v_add_f32_dpp v30, v30, v30 quad_perm:[1,0,3,2] row_mask:0xf bank_mask:0xf")
            a(f"v_add_f32_dpp v{32+gi}, v30, v30 quad_perm:[2,3,0,1] row_mask:0xf bank_mask:0xf")

        def bcast4(v, op, dst):
            for k in range(4):
                a(f"v_readlane_b32 s{76+k}, {v}, {16*k}")
            a(f"v_mov_b32 {dst}, s76")
            for k in range(1, 4):
                a(f"{op} {dst}, s{76+k}, {dst}")

        def softmax():
            cs = f2u(128 ** -0.5 * math.log2(math.e))
            a("v_max3_f32 v24, v32, v33, v34")
            for k in range(35, 47, 2):
                a(f"v_max3_f32 v24, v24, v{k}, v{k+1}")
            a("v_max_f32 v24, v24, v47")
            a("v_max_f32_dpp v24, v24, v24 row_ror:4 row_mask:0xf bank_mask:0xf")
            a("v_max_f32_dpp v24, v24, v24 row_ror:8 row_mask:0xf bank_mask:0xf")
            bcast4("v24", "v_max_f32", "v26")
            a(f"s_mov_b32 s13, {cs:#x}")
            a("v_mul_f32 v26, s13, v26")
            for k in range(16):
                a(f"v_fma_f32 v{32+k}, v{32+k}, s13, -v26")
            for k in range(16):
                a(f"v_exp_f32 v{32+k}, v{32+k}")
            a("v_add_f32 v24, v32, v33")
            a("v_add_f32 v25, v34, v35")
            for k in range(4, 16, 2):
                a(f"v_add_f32 v24, v24, v{32+k}")
                a(f"v_add_f32 v25, v25, v{33+k}")
            a("v_add_f32 v24, v24, v25")
            for k in range(16):
                a(f"v_cvt_pk_bf16_f32 v{32+k}, v{32+k}, v{32+k}")
            a("v_add_f32_dpp v24, v24, v24 row_ror:4 row_mask:0xf bank_mask:0xf")
            a("v_add_f32_dpp v24, v24, v24 row_ror:8 row_mask:0xf bank_mask:0xf")
            bcast4("v24", "v_add_f32", "v27")
            a("s_lshl_b32 s8, s3, 3")
            a("v_mov_b32 v3, s8")
            a("s_mov_b64 exec, 1")
            a(f"ds_write_b64 v3, v[26:27] offset:{L_MLX-32}")
            a(f"ds_add_u32 v4, v5 offset:{C_ML}")
            a("s_mov_b64 exec, -1")
            a("v_mov_b32 v31, v26")

        def factor():
            self.lds_wait(C_ML, 4)
            a(f"ds_read_b128 v[24:27], v4 offset:{L_MLX}")
            a(f"ds_read_b128 v[12:15], v4 offset:{L_MLX+16}")
            a("s_waitcnt lgkmcnt(0)")
            a("v_max3_f32 v28, v24, v26, v12")
            a("v_max_f32 v28, v28, v14")
            for r in ("v24", "v26", "v12", "v14", "v31"):
                a(f"v_sub_f32 {r}, {r}, v28")
            for r in ("v24", "v26", "v12", "v14", "v31"):
                a(f"v_exp_f32 {r}, {r}")
            a("v_mul_f32 v28, v24, v25")
            a("v_fmac_f32 v28, v26, v27")
            a("v_fmac_f32 v28, v12, v13")
            a("v_fmac_f32 v28, v14, v15")
            a("v_rcp_f32 v28, v28")
            a("v_mul_f32 v31, v31, v28")

        BANK = [0, 2, 1, 3]
        def build_a(t):
            A = 16 + 4 * (t & 1)
            for r in range(4):
                a(f"v_and_b32_dpp v{A+r}, v{32+(t>>2)}, v{8+r} row_newbcast:{4*BANK[t&3]} row_mask:0xf bank_mask:0xf")

        def pv(t):
            A = 16 + 4 * (t & 1)
            q = quad(64 + t)
            c = "0" if t == 0 else "v[60:63]"
            return A, q

        OACC = self.OACC
        def pv_mfma(t):
            A = 16 + 4 * (t & 1)
            q = quad(64 + t)
            c = "0" if t == 0 else f"v[{OACC}:{OACC+3}]"
            a(f"v_mfma_f32_16x16x32_bf16 v[{OACC}:{OACC+3}], v[{A}:{A+3}], v[{q}:{q+3}], {c}")

        for i in range(D, self.QWAIT):
            a(f"s_waitcnt vmcnt({D-1})")
            load(i)
        self.stamp(1)
        self.lds_wait(C_QRDY, 1)
        a(f"ds_read_b128 v[12:15], v2 offset:{L_QV}")
        a("s_waitcnt lgkmcnt(0)")
        self.stamp(2)
        fact_at = None
        abuilt = 0
        for i in range(self.QWAIT, 128 + D):
            if i < 128 and i >= R:
                need = i - R
                if need < 64:
                    while state["kdone"] <= need:
                        assert state["kdone"] + 3 <= i - D, "ring too small"
                        qk_group(state["kdone"] // 4)
                        state["kdone"] += 4
                else:
                    assert state["vdone"] > need - 64, "ring too small (V)"
            rem = min(127, i - 1) - (i - D)
            a(f"s_waitcnt vmcnt({rem})")
            if i < 128:
                load(i)
            landed = i - D
            budget = 3
            while state["kdone"] < 64 and state["kdone"] + 3 <= landed and budget > 0:
                qk_group(state["kdone"] // 4)
                state["kdone"] += 4
                budget -= 1
            if state["kdone"] == 64 and not state["soft"]:
                softmax()
                state["soft"] = True
                fact_at = i + 8
                self.stamp(3)
                continue
            if state["soft"]:
                if i == fact_at:
                    factor()
                if i == 64 + 44:
                    self.lds_wait(C_GOK, 1)
                budget = 6
                while state["vdone"] < 64 and 64 + state["vdone"] <= landed and budget > 0:
                    t = state["vdone"]
                    if abuilt <= t:
                        build_a(t)
                        abuilt = t + 1
                    pv_mfma(t)
                    state["vdone"] += 1
                    budget -= 1
                    if t + 1 < 64 and abuilt == t + 1:
                        build_a(t + 1)
                        abuilt = t + 2
        assert state["vdone"] == 64
        self.stamp(4)
        a("v_and_b32 v2, 15, v0")
        a("v_lshlrev_b32 v2, 5, v2")
        a("v_and_b32 v3, 16, v0")
        a("s_lshl_b32 s8, s3, 9")
        a("s_sub_u32 s8, s8, 2048")
        a("v_add3_u32 v2, v2, v3, s8")
        a("v_lshlrev_b32 v3, 4, v0")
        a("v_lshlrev_b32 v6, 3, v0")
        a("s_lshl_b32 s8, s5, 11")
        a("s_lshl_b32 s9, s4, 8")
        a("s_add_u32 s8, s8, s9")
        a(f"s_add_u32 s8, s8, {WS_OB}")
        for r in range(4):
            a(f"v_mul_f32 v{24+r}, v31, v{OACC+r}")
        a("s_mov_b32 exec_hi, 0")
        a(f"ds_write_b128 v2, v[24:27] offset:{L_OPART}")
        a("s_mov_b32 exec_lo, 1")
        a(f"ds_add_rtn_u32 v7, v4, v5 offset:{C_O}")
        a("s_mov_b32 exec_lo, -1")
        a("s_waitcnt lgkmcnt(0)")
        a("v_readfirstlane_b32 s9, v7")
        a("s_cmp_lg_u32 s9, 3")
        a("s_cbranch_scc1 L_SDONE")
        for k in range(4):
            a(f"ds_read_b128 v[{32+4*k}:{35+4*k}], v3 offset:{L_OPART+512*k}")
        a("s_waitcnt lgkmcnt(2)")
        a("v_pk_add_f32 v[32:33], v[32:33], v[36:37]")
        a("v_pk_add_f32 v[34:35], v[34:35], v[38:39]")
        a("s_waitcnt lgkmcnt(0)")
        a("v_pk_add_f32 v[40:41], v[40:41], v[44:45]")
        a("v_pk_add_f32 v[42:43], v[42:43], v[46:47]")
        a("v_pk_add_f32 v[32:33], v[32:33], v[40:41]")
        a("v_pk_add_f32 v[34:35], v[34:35], v[42:43]")
        a("v_cvt_pk_bf16_f32 v32, v32, v33")
        a("v_cvt_pk_bf16_f32 v33, v34, v35")
        a("buffer_store_dwordx2 v[32:33], v6, s[52:55], s8 offen sc1")
        a.label("L_SDONE")
        a("s_mov_b64 exec, -1")
        self.stamp(5)
        self.mlp_role("L_END")
        self.ln_consts()
        a("s_branch L_LN")

    def mlp_role(self, notlabel):
        a = self.a
        a("s_cmp_lt_u32 s2, 192")
        a(f"s_cbranch_scc1 {notlabel}")
        a("s_lshr_b32 s8, s2, 3")
        a("s_and_b32 s43, s8, 1")
        a("s_sub_u32 s8, 31, s8")
        a("s_lshr_b32 s8, s8, 1")
        a("s_lshl_b32 s8, s8, 3")
        a("s_and_b32 s42, s2, 7")
        a("s_add_u32 s42, s42, s8")
        a("s_cmp_ge_u32 s42, 27")
        a(f"s_cbranch_scc1 {notlabel}")

    def ln_consts(self):
        a = self.a
        a("v_lshlrev_b32 v7, 6, v0")
        a("s_lshl_b32 s8, s3, 3")
        a(f"s_add_u32 s8, s8, {WS_ML + 10240}")
        for ch in range(2):
            for k in range(3):
                a(f"s_add_u32 s9, s8, {ch*10240 + k*4096}")
                a(f"buffer_load_dwordx2 v[{40+6*ch+2*k}:{41+6*ch+2*k}], v7, s[52:55], s9 offen sc1")
        a("v_lshrrev_b32 v6, 1, v0")
        a("v_mul_u32_u24 v6, 144, v6")
        a("v_and_b32 v7, 1, v0")
        a("v_lshl_add_u32 v6, v7, 3, v6")
        a("s_lshl_b32 s9, s3, 4")
        a("v_add_u32 v6, s9, v6")
        a("v_lshlrev_b32 v7, 3, v0")
        a("s_mul_i32 s11, s3, 1280")
        a(f"s_add_u32 s11, s11, {WS_X1}")
        a("s_waitcnt vmcnt(0)")
        for k in range(6):
            self.unpack(f"v{28+2*k}", f"v{29+2*k}", f"v{40+k}")
            self.unpack(f"v{16+2*k}", f"v{17+2*k}", f"v{46+k}")
        for k in range(12):
            a(f"v_add_f32 v{16+k}, 1.0, v{16+k}")
        for r in (44, 45, 54, 55, 56, 57):
            a(f"v_mov_b32 v{r}, 0")
        a("v_mov_b32 v2, 0x3f80")
        a("v_mov_b32 v3, 1.0")

    def ln_stage(self):
        a = self.a
        a.label("L_LN")
        L0 = a.newlabel("LNL")
        L = a.newlabel("LNP")
        Lok = a.newlabel("LNok")
        MK = ["s[92:93]", "s[94:95]", "s[78:79]"]
        a(f"s_mov_b32 s7, {self.spin}")
        a(f"s_mov_b32 s10, {SENT:#x}")
        a(f"s_mov_b64 {MK[0]}, -1")
        a(f"s_mov_b64 {MK[1]}, -1")
        a("s_mov_b32 s78, -1")
        a("s_mov_b32 s79, 0")
        a("s_mov_b64 exec, 0xffff")
        a.label(L0)
        a("buffer_load_dwordx2 v[40:41], v7, s[52:55], s11 offen sc1")
        a("s_waitcnt vmcnt(0)")
        a("v_cmp_ne_u32 vcc, s10, v40")
        a(f"s_cbranch_vccnz {L}")
        a("s_sub_u32 s7, s7, 1")
        a(f"s_cbranch_scc0 {L0}")
        a("s_branch L_END")
        a.label(L)
        for k in range(3):
            Ls = a.newlabel("LNk")
            a(f"s_mov_b64 exec, {MK[k]}")
            a(f"s_cbranch_execz {Ls}")
            a(f"buffer_load_dwordx2 v[{40+2*k}:{41+2*k}], v7, s[52:55], s11 offen offset:{512*k} sc1")
            a.label(Ls)
        a("s_mov_b64 exec, -1")
        a("s_waitcnt vmcnt(0)")
        a("v_max3_u32 v58, v40, v41, v42")
        a("v_readfirstlane_b32 s8, v40")
        a("v_max3_u32 v59, v43, v44, v45")
        a("v_max_u32 v58, v58, v59")
        a("v_cmp_le_u32 vcc, s10, v58")
        a(f"s_cbranch_vccz {Lok}")
        a("s_mov_b64 s[12:13], 0")
        for k in range(3):
            a(f"v_cmp_eq_u32 {MK[k]}, s10, v{40+2*k}")
            a(f"v_cmp_eq_u32 vcc, s10, v{41+2*k}")
            a(f"s_or_b64 {MK[k]}, {MK[k]}, vcc")
            a(f"s_or_b64 s[12:13], s[12:13], {MK[k]}")
        a("s_cmp_eq_u64 s[12:13], 0")
        a(f"s_cbranch_scc1 {Lok}")
        a("s_sub_u32 s7, s7, 1")
        a(f"s_cbranch_scc0 {L}")
        a("s_branch L_END")
        a.label(Lok)
        self.stamp(6)
        a("s_lshl_b32 s8, s8, 16")
        a("s_xor_b32 s8, s8, 0x80000000")
        for k in range(4):
            a(f"v_dot2_f32_bf16 v{46+2*k}, v{40+k}, v2, s8")
            a(f"v_dot2_f32_bf16 v{47+2*k}, v{40+k}, v3, s8")
        a("s_mov_b32 exec_hi, 0")
        for k in range(4, 6):
            a(f"v_dot2_f32_bf16 v{46+2*k}, v{40+k}, v2, s8")
            a(f"v_dot2_f32_bf16 v{47+2*k}, v{40+k}, v3, s8")
        a("s_mov_b64 exec, -1")
        a("v_pk_add_f32 v[58:59], v[46:47], v[48:49]")
        a("v_pk_mul_f32 v[60:61], v[46:47], v[46:47]")
        a("v_pk_fma_f32 v[60:61], v[48:49], v[48:49], v[60:61]")
        for k in range(2, 6):
            a(f"v_pk_add_f32 v[58:59], v[58:59], v[{46+2*k}:{47+2*k}]")
            a(f"v_pk_fma_f32 v[60:61], v[{46+2*k}:{47+2*k}], v[{46+2*k}:{47+2*k}], v[60:61]")
        a("v_add_f32 v58, v58, v59")
        a("v_add_f32 v59, v60, v61")
        fill = [f"v_pk_mul_f32 v[{46+2*k}:{47+2*k}], v[{46+2*k}:{47+2*k}], v[{16+2*k}:{17+2*k}]" for k in range(6)]
        a(fill.pop())
        a(fill.pop())
        a("v_permlane16_swap_b32 v58, v59")
        a("v_add_f32 v58, v58, v59")
        for k in (1, 2, 4, 8):
            if fill:
                a(fill.pop())
            a(f"v_add_f32_dpp v58, v58, v58 row_ror:{k} row_mask:0xf bank_mask:0xf")
        for k in range(4):
            a(f"v_readlane_b32 s{76+k}, v58, {16*k}")
        a("v_mov_b32 v60, s76")
        a("v_mov_b32 v61, s77")
        a("v_add_f32 v60, s78, v60")
        a("v_add_f32 v61, s79, v61")
        a(f"v_mul_f32 v60, {f2u(-1/640):#x}, v60")
        a(f"v_mul_f32 v61, {f2u(1/640):#x}, v61")
        a("v_fma_f32 v61, -v60, v60, v61")
        a("v_max_f32 v61, 0, v61")
        a(f"v_add_f32 v61, {f2u(1e-5):#x}, v61")
        a("v_rsq_f32 v61, v61")
        for k in range(6):
            a(f"v_pk_fma_f32 v[{46+2*k}:{47+2*k}], v[{16+2*k}:{17+2*k}], v[60:61], v[{46+2*k}:{47+2*k}] op_sel_hi:[1,0,1]")
        for k in range(6):
            a(f"v_pk_fma_f32 v[{46+2*k}:{47+2*k}], v[{46+2*k}:{47+2*k}], v[60:61], v[{28+2*k}:{29+2*k}] op_sel:[0,1,0] op_sel_hi:[1,1,1]")
        for k in range(6):
            a(f"v_cvt_pk_bf16_f32 v{40+k}, v{46+2*k}, v{47+2*k}")
        a(f"ds_write_b64 v6, v[40:41] offset:{L_ACT}")
        a(f"ds_write_b64 v6, v[42:43] offset:{L_ACT + 32*144}")
        a("s_mov_b32 exec_hi, 0")
        a(f"ds_write_b64 v6, v[44:45] offset:{L_ACT + 64*144}")
        a("s_mov_b64 exec, -1")
        a("s_waitcnt lgkmcnt(0)")
        a("s_barrier")
        a("s_cmp_ge_u32 s3, 4")
        a("s_cbranch_scc1 L_END")
        self.gemm640(64, 184, 18, 40)
        self.silu([f"v{40+r}" for r in range(4)], [f"v{44+r}" for r in range(4)])
        a("v_cvt_pk_bf16_f32 v40, v40, v41")
        a("v_cvt_pk_bf16_f32 v41, v42, v43")
        a("s_mov_b32 exec_lo, 0x00ff00ff")
        a("s_mov_b32 exec_hi, 0x00ff00ff")
        a(f"ds_write_b64 v62, v[40:41] offset:{L_HB}")
        a("s_mov_b64 exec, -1")
        a("s_waitcnt lgkmcnt(0)")
        a("s_barrier")
        a(f"ds_read_b128 v[184:187], v9 offset:{L_HB}")
        a(f"ds_read_b128 v[188:191], v9 offset:{L_HB+576}")
        a("s_waitcnt lgkmcnt(1)")
        for blk in range(5):
            A = 144 + 8 * blk
            a(f"v_mfma_f32_16x16x32_bf16 v[{192+4*blk}:{195+4*blk}], v[{A}:{A+3}], v[184:187], 0")
        a("s_waitcnt lgkmcnt(0)")
        for blk in range(5):
            A = 148 + 8 * blk
            a(f"v_mfma_f32_16x16x32_bf16 v[{192+4*blk}:{195+4*blk}], v[{A}:{A+3}], v[188:191], v[{192+4*blk}:{195+4*blk}]")
        a("s_mov_b32 exec_lo, 0x00ff00ff")
        a("s_mov_b32 exec_hi, 0x00ff00ff")
        for blk in range(5):
            a(f"buffer_store_dwordx4 v[{192+4*blk}:{195+4*blk}], v63, s[52:55], s{80+blk} offen sc1") if blk < 4 else \
                a(f"buffer_store_dwordx4 v[{192+4*blk}:{195+4*blk}], v63, s[52:55], s14 offen sc1")
        a("s_mov_b64 exec, -1")
        self.stamp(7)
        a("s_branch L_END")

    def helper(self):
        a = self.a
        a.label("L_HELPER")
        a("s_setprio 2")
        a("v_mov_b32 v4, 0")
        a("v_mov_b32 v5, 1")
        a("v_lshrrev_b32 v1, 4, v0")
        a("v_and_b32 v2, 15, v0")
        a("v_and_b32 v3, 7, v0")
        a("v_lshlrev_b32 v10, 1, v1")
        a("v_xor_b32 v10, v10, v3")
        a("v_lshlrev_b32 v10, 4, v10")
        a("v_lshrrev_b32 v11, 5, v0")
        a("v_lshlrev_b32 v11, 3, v11")
        a("v_bfe_u32 v6, v0, 3, 2")
        a("v_add_u32 v11, v11, v6")
        a("s_mov_b32 s15, 0")
        a("s_waitcnt lgkmcnt(0)")
        self.srd(52, 40, self.ws_bytes)
        a("buffer_load_dword v13, v4, s[52:55], 0 offen sc1")
        self.stamp(0)
        a("s_cmp_ge_u32 s2, 160")
        a("s_cbranch_scc1 L_HI")
        a("s_and_b32 s8, s2, 7")
        a("s_mul_i32 s8, s8, 20")
        a("s_lshr_b32 s9, s2, 3")
        a("s_add_u32 s8, s8, s9")
        a("s_lshr_b32 s42, s8, 5")
        a("s_and_b32 s43, s8, 31")
        self.srd(56, 22, 640 * 8192)
        self.srd(64, 16, 10240)
        a("v_lshrrev_b32 v6, 5, v0")
        a("v_mul_u32_u24 v6, 1280, v6")
        a("v_and_b32 v7, 31, v0")
        a("v_lshl_add_u32 v6, v7, 3, v6")
        a("s_mul_i32 s8, s3, 2560")
        for k in range(5):
            a(f"buffer_load_dwordx2 v[{20+2*k}:{21+2*k}], v6, s[64:67], s8 offen offset:{256*k}")
        a("v_mul_u32_u24 v6, 1280, v3")
        a("v_lshl_add_u32 v6, v1, 4, v6")
        a("s_lshl_b32 s8, s42, 8")
        a("s_lshl_b32 s9, s3, 6")
        a("s_add_u32 s8, s8, s9")
        a("buffer_load_dwordx4 v[52:55], v6, s[64:67], s8 offen")
        self.dma_voff(8192)
        a("s_lshl_b32 s8, s42, 20")
        a("s_lshl_b32 s9, s3, 18")
        a("s_add_u32 s8, s8, s9")
        a("s_lshl_b32 s9, s43, 8")
        a("s_add_u32 s8, s8, s9")
        a("s_lshl_b32 s9, s3, 12")
        a(f"s_add_u32 s9, s9, {L_W}")
        self.dma("s[56:59]", 8192, "s8", "s9", 2, 128, 16384)
        self.init_barrier(True)
        self.common_addrs()
        a("s_waitcnt vmcnt(9)")
        self.get_tag()
        for k in range(10):
            self.unpack(f"v{30+2*k}", f"v{31+2*k}", f"v{20+k}")
        a("v_pk_add_f32 v[20:21], v[30:31], v[32:33]")
        for k in range(2, 10):
            a(f"v_pk_add_f32 v[20:21], v[20:21], v[{30+2*k}:{31+2*k}]")
        a("v_add_f32 v20, v20, v21")
        self.row_allreduce("v20")
        a("v_mov_b32 v21, v20")
        a("v_permlane16_swap_b32 v20, v21")
        a("v_add_f32 v20, v20, v21")
        a(f"v_mul_f32 v22, {f2u(1/640):#x}, v20")
        for k in range(20):
            a(f"v_sub_f32 v{30+k}, v{30+k}, v22")
        a("v_pk_mul_f32 v[20:21], v[30:31], v[30:31]")
        for k in range(1, 10):
            a(f"v_pk_fma_f32 v[20:21], v[{30+2*k}:{31+2*k}], v[{30+2*k}:{31+2*k}], v[20:21]")
        a("v_add_f32 v20, v20, v21")
        self.row_allreduce("v20")
        a("v_mov_b32 v21, v20")
        a("v_permlane16_swap_b32 v20, v21")
        a("v_add_f32 v20, v20, v21")
        a(f"v_mul_f32 v20, {f2u(1/640):#x}, v20")
        a(f"v_add_f32 v20, {f2u(1e-5):#x}, v20")
        a("v_rsq_f32 v23, v20")
        a("v_lshrrev_b32 v6, 5, v0")
        a("v_lshlrev_b32 v6, 3, v6")
        a("s_lshl_b32 s8, s3, 4")
        a("v_add_u32 v6, s8, v6")
        a("s_mov_b32 exec_lo, 1")
        a("s_mov_b32 exec_hi, 1")
        a(f"ds_write_b64 v6, v[22:23] offset:{L_STAT}")
        a("s_mov_b64 exec, -1")
        self.gsync()
        a("v_lshlrev_b32 v6, 3, v3")
        a(f"ds_read_b64 v[22:23], v6 offset:{L_STAT}")
        for k in range(4):
            self.unpack(f"v{30+2*k}", f"v{31+2*k}", f"v{52+k}")
        a("v_lshrrev_b32 v6, 3, v2")
        a("v_mul_u32_u24 v6, 20480, v6")
        a("v_lshl_add_u32 v6, v1, 8, v6")
        a("v_lshl_add_u32 v6, v3, 4, v6")
        a("s_lshl_b32 s8, s42, 12")
        a("s_lshl_b32 s9, s3, 10")
        a("s_add_u32 s8, s8, s9")
        a(f"s_add_u32 s8, s8, {WS_MG}")
        a("s_waitcnt lgkmcnt(0)")
        for k in range(8):
            a(f"v_sub_f32 v{30+k}, v{30+k}, v22")
        for k in range(8):
            a(f"v_mul_f32 v{30+k}, v{30+k}, v23")
        self.stamp(1)
        L = a.newlabel("MGP")
        Lok = a.newlabel("MGok")
        a(f"s_mov_b32 s7, {self.spin}")
        a.label(L)
        a("buffer_load_dwordx4 v[56:59], v6, s[52:55], s8 offen sc1")
        a("buffer_load_dwordx4 v[60:63], v6, s[52:55], s8 offen offset:128 sc1")
        a("s_waitcnt vmcnt(0)")
        for r in (57, 59, 61, 63):
            a(f"v_xor_b32 v{r}, s6, v{r}")
        a("v_or3_b32 v57, v57, v59, v61")
        a("v_or_b32 v57, v57, v63")
        a("v_cmp_ne_u32 vcc, 0, v57")
        a(f"s_cbranch_vccz {Lok}")
        a("s_sleep 4")
        a("s_sub_u32 s7, s7, 1")
        a(f"s_cbranch_scc0 {L}")
        a("s_branch L_END")
        a.label(Lok)
        self.stamp(2)
        for k in range(4):
            a(f"v_mov_b32_dpp v{57+2*k}, v{56+2*k} row_ror:8 row_mask:0xf bank_mask:0xf")
        for k in range(4):
            self.unpack(f"v{40+2*k}", f"v{41+2*k}", f"v{56+2*k}")
            self.unpack(f"v{20+2*k}", f"v{21+2*k}", f"v{57+2*k}")
        for k in range(8):
            a(f"v_add_f32 v{40+k}, v{40+k}, v{30+k}")
        for k in range(8):
            a(f"v_fmac_f32 v{40+k}, v{30+k}, v{20+k}")
        for k in range(4):
            a(f"v_cvt_pk_bf16_f32 v{48+k}, v{40+2*k}, v{41+2*k}")
        a("s_mul_i32 s8, s3, 576")
        a("v_add_u32 v6, s8, v9")
        a("s_mov_b32 exec_lo, 0x00ff00ff")
        a("s_mov_b32 exec_hi, 0x00ff00ff")
        a(f"ds_write_b128 v6, v[48:51] offset:{L_HB}")
        a("s_mov_b64 exec, -1")
        self.tr_reads(64, [L_W + 16384 * blk + 4096 * i for blk in range(2) for i in range(4)])
        self.gsync()
        for i in range(4):
            a(f"ds_read_b128 v[{96+4*i}:{99+4*i}], v9 offset:{L_HB+576*i}")
        a("v_and_b32 v6, 1, v1")
        a("v_mul_u32_u24 v6, 20480, v6")
        a("v_lshrrev_b32 v7, 1, v1")
        a("v_lshl_add_u32 v6, v7, 9, v6")
        a("v_lshl_add_u32 v6, v2, 3, v6")
        a("s_mul_i32 s8, s43, 40960")
        a("s_lshl_b32 s9, s42, 10")
        a("s_add_u32 s8, s8, s9")
        a("s_lshl_b32 s9, s3, 7")
        a("s_add_u32 s8, s8, s9")
        a(f"s_add_u32 s80, s8, {WS_QP}")
        for r in range(1, 4):
            a(f"s_add_u32 s{80+r}, s80, {5120*r}")
        for r in range(4):
            a(f"v_mov_b32 v{33+2*r}, s6")
        a("v_cmp_le_u32 vcc, 32, v0")
        a("s_waitcnt lgkmcnt(0)")
        for i in range(4):
            for blk in range(2):
                A = 64 + 16 * blk + 4 * i
                c = "0" if i == 0 else f"v[{20+4*blk}:{23+4*blk}]"
                a(f"v_mfma_f32_16x16x32_bf16 v[{20+4*blk}:{23+4*blk}], v[{96+4*i}:{99+4*i}], v[{A}:{A+3}], {c}")
        for r in range(4):
            a(f"v_cndmask_b32 v{32+2*r}, v{20+r}, v{24+r}, vcc")
        for r in range(4):
            a(f"buffer_store_dwordx2 v[{32+2*r}:{33+2*r}], v6, s[52:55], s{80+r} offen sc1")
        self.stamp(3)
        a("s_branch L_ARRIVE")

        a.label("L_HI")
        a("s_cmp_ge_u32 s2, 220")
        a("s_cbranch_scc1 L_NOROLE")
        a("s_sub_u32 s42, s2, 160")
        self.srd(56, 34, 640 * 7680)
        self.srd(64, 32, 10240)
        a("v_lshlrev_b32 v6, 3, v0")
        a("s_mul_i32 s8, s3, 2560")
        for k in range(5):
            a(f"buffer_load_dwordx2 v[{20+2*k}:{21+2*k}], v6, s[64:67], s8 offen offset:{512*k}")
        self.dma_voff(7680)
        a(f"s_mul_i32 s8, s3, {160*7680}")
        a("s_lshl_b32 s9, s42, 7")
        a("s_add_u32 s8, s8, s9")
        a("s_mul_i32 s9, s3, 20480")
        a(f"s_add_u32 s9, s9, {L_W}")
        self.dma("s[56:59]", 7680, "s8", "s9", 5, 32 * 7680, 4096)
        self.init_barrier(True)
        self.common_addrs()
        for k in range(5):
            t = f"v{50+k}"
            a(f"v_add_u32 v6, {64*k}, v0")
            a("v_cmp_le_u32 vcc, 160, v6")
            a("v_subrev_u32 v7, 160, v6")
            a("v_cndmask_b32 v6, v6, v7, vcc")
            a("v_cndmask_b32 v7, 0, v5, vcc")
            a(f"v_lshrrev_b32 {t}, 1, v6")
            a(f"v_mul_u32_u24 {t}, 144, {t}")
            a("v_and_b32 v6, 1, v6")
            a(f"v_lshl_add_u32 {t}, v6, 3, {t}")
            a(f"v_lshl_add_u32 {t}, v7, 4, {t}")
            a("s_lshl_b32 s8, s3, 5")
            a(f"v_add_u32 {t}, s8, {t}")
        a("s_waitcnt vmcnt(20)")
        self.get_tag()
        for k in range(10):
            self.unpack(f"v{30+2*k}", f"v{31+2*k}", f"v{20+k}")
        self.silu([f"v{30+k}" for k in range(20)], [f"v{64+k}" for k in range(20)])
        for k in range(10):
            a(f"v_cvt_pk_bf16_f32 v{20+k}, v{30+2*k}, v{31+2*k}")
        for k in range(5):
            a(f"ds_write_b64 v{50+k}, v[{20+2*k}:{21+2*k}] offset:{L_ACT}")
        self.gsync()
        self.stamp(1)
        self.tr_reads(64, [L_W + 4096 * i for i in range(20)])
        a("s_waitcnt lgkmcnt(0)")
        self.gemm640(64, 184, 18, 40)
        a("s_mul_i32 s8, s42, 205")
        a("s_lshr_b32 s8, s8, 11")
        a("s_mul_i32 s9, s8, 10")
        a("s_sub_u32 s9, s42, s9")
        a("s_lshl_b32 s9, s9, 2")
        a("s_add_u32 s9, s9, s3")
        a("v_cvt_pk_bf16_f32 v44, v40, v41")
        a("v_cvt_pk_bf16_f32 v46, v42, v43")
        a("s_mov_b32 exec_lo, 0x00ff00ff")
        a("s_mov_b32 exec_hi, 0x00ff00ff")
        a("s_cmp_ge_u32 s8, 2")
        a("s_cbranch_scc1 L_MODLATE")
        a("v_mov_b32 v45, s6")
        a("v_mov_b32 v47, s6")
        a("v_lshlrev_b32 v6, 7, v1")
        a("v_lshl_add_u32 v6, v2, 4, v6")
        a("s_mul_i32 s8, s8, 20480")
        a("s_lshl_b32 s9, s9, 9")
        a("s_add_u32 s8, s8, s9")
        a(f"s_add_u32 s8, s8, {WS_MG}")
        a("buffer_store_dwordx4 v[44:47], v6, s[52:55], s8 offen sc1")
        a("s_mov_b64 exec, -1")
        self.stamp(3)
        a("s_branch L_ARRIVE")
        a.label("L_MODLATE")
        a("v_mov_b32 v45, v46")
        a("v_lshlrev_b32 v6, 6, v1")
        a("v_lshl_add_u32 v6, v2, 3, v6")
        a("s_mul_i32 s8, s8, 10240")
        a("s_lshl_b32 s9, s9, 8")
        a("s_add_u32 s8, s8, s9")
        a(f"s_add_u32 s8, s8, {WS_ML - 20480}")
        a("buffer_store_dwordx2 v[44:45], v6, s[52:55], s8 offen sc1")
        a("s_mov_b64 exec, -1")
        a("s_branch L_ARRIVE")

        a.label("L_NOROLE")
        self.init_barrier(True)
        self.common_addrs()
        a("s_waitcnt vmcnt(0)")
        self.get_tag()

        a.label("L_ARRIVE")
        self.clear_tail()
        a("s_waitcnt vmcnt(0)")
        a("s_mov_b64 exec, 1")
        a(f"ds_add_rtn_u32 v6, v4, v5 offset:{C_ARR}")
        a("s_waitcnt lgkmcnt(0)")
        a("v_readfirstlane_b32 s8, v6")
        a("s_cmp_lg_u32 s8, 3")
        a("s_cbranch_scc1 L_ARR2")
        a("v_mov_b32 v6, s6")
        a("s_lshl_b32 s8, s2, 2")
        a(f"buffer_store_dword v6, v4, s[52:55], s8 offen offset:{WS_ARR} sc1")
        a.label("L_ARR2")
        a("s_mov_b64 exec, -1")
        a("s_cmp_eq_u32 s3, 1")
        a("s_cbranch_scc1 L_QGATHER")
        a("s_cmp_eq_u32 s3, 0")
        a("s_cbranch_scc0 L_TAILROLE")
        self.lds_wait(C_PROG, 2, sleep=8)
        L = a.newlabel("GP")
        Lok = a.newlabel("GPok")
        a("v_lshlrev_b32 v7, 4, v0")
        a(f"s_mov_b32 s7, {self.spin}")
        a.label(L)
        a(f"buffer_load_dwordx4 v[20:23], v7, s[52:55], 0 offen offset:{WS_ARR} sc1")
        a("s_waitcnt vmcnt(0)")
        for r in range(20, 24):
            a(f"v_xor_b32 v{r}, s6, v{r}")
        a("v_or3_b32 v20, v20, v21, v22")
        a("v_or_b32 v20, v20, v23")
        a("v_cmp_ne_u32 vcc, 0, v20")
        a(f"s_cbranch_vccz {Lok}")
        a("s_sleep 32")
        a("s_sub_u32 s7, s7, 1")
        a(f"s_cbranch_scc0 {L}")
        a("s_branch L_END")
        a.label(Lok)
        self.lds_inc(C_GOK)
        self.stamp(4)
        a("s_cmp_lg_u32 s2, 0")
        a("s_cbranch_scc1 L_TAILROLE")
        a("v_mov_b32 v6, s12")
        a("s_mov_b64 exec, 1")
        a(f"buffer_store_dword v6, v4, s[52:55], 0 offen offset:{WS_EPOCH} sc1")
        a("s_mov_b64 exec, -1")
        a("s_branch L_TAILROLE")

        a.label("L_QGATHER")
        a("v_lshlrev_b32 v6, 4, v0")
        a("s_lshl_b32 s8, s5, 3")
        a("s_add_u32 s8, s8, s4")
        a("s_mul_i32 s8, s8, 5120")
        a(f"s_add_u32 s8, s8, {WS_QP}")
        a("s_add_u32 s9, s8, 4096")
        self.lds_wait(C_PROG, 1, sleep=2, vt="v7")
        L = a.newlabel("QG")
        MK = ["s[44:45]", "s[46:47]", "s[48:49]", "s[50:51]", "s[92:93]"]
        Lok = a.newlabel("QGok")
        for k in range(5):
            a(f"s_mov_b64 {MK[k]}, -1")
        a(f"s_mov_b32 s7, {self.spin}")
        a.label(L)
        for k in range(5):
            Ls = a.newlabel("QGs")
            a(f"s_mov_b64 exec, {MK[k]}")
            a(f"s_cbranch_execz {Ls}")
            if k < 4:
                a(f"buffer_load_dwordx4 v[{20+4*k}:{23+4*k}], v6, s[52:55], s8 offen offset:{1024*k} sc1")
            else:
                a("buffer_load_dwordx4 v[36:39], v6, s[52:55], s9 offen sc1")
            a.label(Ls)
        a("s_mov_b64 exec, -1")
        a("s_waitcnt vmcnt(0)")
        a("s_mov_b64 s[10:11], 0")
        for k in range(5):
            a(f"v_cmp_ne_u32 {MK[k]}, s6, v{21+4*k}")
            a(f"v_cmp_ne_u32 vcc, s6, v{23+4*k}")
            a(f"s_or_b64 {MK[k]}, {MK[k]}, vcc")
            a(f"s_or_b64 s[10:11], s[10:11], {MK[k]}")
        a("s_cmp_eq_u64 s[10:11], 0")
        a(f"s_cbranch_scc1 {Lok}")
        a("s_sleep 2")
        a("s_sub_u32 s7, s7, 1")
        a(f"s_cbranch_scc0 {L}")
        a("s_branch L_END")
        a.label(Lok)
        for k in range(1, 5):
            a(f"v_add_f32 v20, v20, v{20+4*k}")
            a(f"v_add_f32 v22, v22, v{22+4*k}")
        a("v_cvt_pk_bf16_f32 v20, v20, v22")
        a("v_lshlrev_b32 v6, 2, v0")
        a(f"ds_write_b32 v6, v20 offset:{L_QV}")
        self.lds_inc(C_QRDY)
        self.stamp(4)

        a.label("L_TAILROLE")
        a("s_cmp_ge_u32 s2, 160")
        a("s_cbranch_scc1 L_TAILHI")
        self.srd(56, 24, 4096 * 1280)
        self.srd(64, 16, 10240)
        self.srd(68, 36, 10240)
        self.lds_wait(C_GOK, 1, sleep=8)
        a("v_lshrrev_b32 v6, 1, v1")
        a("v_lshlrev_b32 v6, 2, v6")
        a("v_lshl_add_u32 v7, v3, 3, v6")
        a("s_lshl_b32 s8, s2, 6")
        a(f"s_add_u32 s8, s8, {WS_ML}")
        a("s_add_u32 s9, s8, 30720")
        a("buffer_load_dword v49, v7, s[52:55], s8 offen sc1")
        a("buffer_load_dword v50, v7, s[52:55], s9 offen sc1")
        a("v_mul_u32_u24 v51, 1280, v3")
        a("v_add_u32 v7, v51, v6")
        a("s_lshl_b32 s42, s2, 3")
        a("buffer_load_dword v48, v7, s[64:67], s42 offen")
        a("buffer_load_dword v52, v7, s[68:71], s42 offen")
        a("v_and_b32 v6, 1, v1")
        a("v_lshlrev_b32 v6, 4, v6")
        a("v_sub_u32 v6, 16, v6")
        self.dma_voff(1280)
        a("s_waitcnt vmcnt(0)")
        for r in (48, 49, 50):
            a(f"v_lshlrev_b32 v{r}, v6, v{r}")
            a(f"v_and_b32 v{r}, 0xffff0000, v{r}")
        for r in range(36, 40):
            a(f"v_mov_b32 v{r}, 0")
        a(f"s_mul_i32 s8, s5, {128*1280}")
        a(f"s_mul_i32 s9, s3, {32*1280}")
        a("s_add_u32 s8, s8, s9")
        a("s_lshl_b32 s9, s4, 8")
        a("s_add_u32 s8, s8, s9")
        a("s_lshl_b32 s9, s3, 12")
        a(f"s_add_u32 s9, s9, {L_W + 32768}")
        self.lds_wait(C_PROG, 4, sleep=2)
        self.dma("s[56:59]", 1280, "s8", "s9", 2, 128, 16384)
        a("v_mul_u32_u24 v53, 144, v2")
        a("v_lshl_add_u32 v53, v1, 4, v53")
        a("s_lshl_b32 s9, s3, 5")
        a("v_add_u32 v53, s9, v53")
        a("v_lshlrev_b32 v54, 12, v1")
        a("v_lshl_add_u32 v54, v2, 4, v54")
        a("v_lshlrev_b32 v7, 4, v0")
        a("s_lshl_b32 s11, s5, 11")
        a("s_lshl_b32 s9, s3, 9")
        a("s_add_u32 s11, s11, s9")
        a(f"s_add_u32 s11, s11, {WS_OB}")
        a("s_lshl_b32 s80, s4, 17")
        a("s_lshl_b32 s9, s3, 14")
        a("s_add_u32 s80, s80, s9")
        a("s_lshl_b32 s9, s5, 7")
        a("s_add_u32 s80, s80, s9")
        a(f"s_add_u32 s80, s80, {WS_PA}")
        a("s_add_u32 s81, s80, 0x10000")
        a("s_lshl_b32 s82, s2, 12")
        a(f"s_add_u32 s83, s82, {WS_PY}")
        a(f"s_add_u32 s82, s82, {WS_PA}")
        a(f"s_add_u32 s43, s42, {WS_X1}")
        self.gsync()
        self.tr_reads(64, [L_W + 32768 + 16384 * blk + 4096 * i for blk in range(2) for i in range(4)])
        a("s_waitcnt lgkmcnt(0)")
        self.stamp(5)
        self.lds_wait(C_O, 1)
        L = a.newlabel("OBP")
        Lok = a.newlabel("OBok")
        a(f"s_mov_b32 s7, {self.spin}")
        a(f"s_mov_b32 s10, {SENT:#x}")
        a("s_mov_b32 exec_hi, 0")
        a.label(L)
        a("buffer_load_dwordx4 v[96:99], v7, s[52:55], s11 offen sc1")
        a("s_waitcnt vmcnt(0)")
        a("v_max3_u32 v100, v96, v97, v98")
        a("v_max_u32 v100, v100, v99")
        a("v_cmp_le_u32 vcc, s10, v100")
        a(f"s_cbranch_vccz {Lok}")
        a("v_cmp_eq_u32 s[8:9], s10, v96")
        for r in range(97, 100):
            a(f"v_cmp_eq_u32 vcc, s10, v{r}")
            a("s_or_b64 s[8:9], s[8:9], vcc")
        a("s_cmp_eq_u64 s[8:9], 0")
        a(f"s_cbranch_scc1 {Lok}")
        a("s_mov_b64 exec, s[8:9]")
        a("s_sub_u32 s7, s7, 1")
        a(f"s_cbranch_scc0 {L}")
        a("s_branch L_END")
        a.label(Lok)
        a("s_mov_b32 exec_lo, -1")
        a(f"ds_write_b128 v53, v[96:99] offset:{L_HB}")
        a("s_mov_b32 exec_hi, -1")
        a("s_waitcnt lgkmcnt(0)")
        a("s_barrier")
        for i in range(4):
            a(f"ds_read_b128 v[{96+4*i}:{99+4*i}], v9 offset:{L_HB+576*i}")
        for i in range(4):
            a(f"s_waitcnt lgkmcnt({3-i})")
            for blk in range(2):
                A = 64 + 16 * blk + 4 * i
                c = "0" if i == 0 else f"v[{112+4*blk}:{115+4*blk}]"
                a(f"v_mfma_f32_16x16x32_bf16 v[{112+4*blk}:{115+4*blk}], v[{A}:{A+3}], v[{96+4*i}:{99+4*i}], {c}")
        a("s_mov_b32 exec_lo, 0x00ff00ff")
        a("s_mov_b32 exec_hi, 0x00ff00ff")
        a("buffer_store_dwordx4 v[112:115], v54, s[52:55], s80 offen sc1")
        a("buffer_store_dwordx4 v[116:119], v54, s[52:55], s81 offen sc1")
        a("s_mov_b64 exec, -1")
        self.stamp(6)
        a("s_cmp_lg_u32 s3, 0")
        a("s_cbranch_scc1 L_END")
        self.reduce_poll("s82", 32, "T2")
        a("v_fma_f32 v40, v49, v40, v48")
        a("v_mov_b32 v48, v40")
        self.pack4_rows("v40", "v41", 42)
        a("s_mov_b64 exec, 0xff")
        a("buffer_store_dwordx2 v[42:43], v51, s[52:55], s43 offen sc1")
        a("s_mov_b64 exec, -1")
        self.stamp(7)
        a("v_cvt_pk_bf16_f32 v48, v48, v48")
        a("v_and_b32 v48, 0xffff0000, v48")
        for r in range(36, 40):
            a(f"v_mov_b32 v{r}, 0")
        if self.t4_sleep:
            a(f"s_sleep {self.t4_sleep}")
        self.reduce_poll("s83", 27, "T4")
        a("v_fma_f32 v40, v50, v40, v48")
        self.pack4_rows("v40", "v41", 42)
        a("s_mov_b64 exec, 0xff")
        a("buffer_store_dwordx2 v[42:43], v51, s[68:71], s42 offen")
        a("s_mov_b64 exec, -1")
        self.stamp(3)
        a("s_branch L_END")

        a.label("L_TAILHI")
        self.mlp_role("L_END")
        self.srd(56, 28, 640 * 3456)
        self.srd(60, 30, 1728 * 1280)
        self.lds_wait(C_GOK, 1, sleep=8)
        self.lds_wait(C_PROG, 3, sleep=2)
        self.dma_voff(3456)
        a(f"s_mul_i32 s8, s3, {160*3456}")
        a("s_lshl_b32 s9, s42, 7")
        a("s_add_u32 s8, s8, s9")
        a("s_mul_i32 s9, s3, 20480")
        a(f"s_add_u32 s9, s9, {L_W}")
        self.dma("s[56:59]", 3456, "s8", "s9", 5, 32 * 3456, 4096)
        self.dma_voff(1280)
        a("s_and_b32 s10, s3, 1")
        a("s_lshr_b32 s11, s3, 1")
        a(f"s_mul_i32 s8, s42, {64*1280}")
        a(f"s_mul_i32 s9, s10, {32*1280}")
        a("s_add_u32 s8, s8, s9")
        a("s_mul_i32 s9, s43, 640")
        a("s_add_u32 s8, s8, s9")
        a("s_lshl_b32 s9, s11, 7")
        a("s_add_u32 s8, s8, s9")
        a("s_lshl_b32 s9, s11, 13")
        a("s_lshl_b32 s10, s10, 12")
        a("s_add_u32 s9, s9, s10")
        a(f"s_add_u32 s9, s9, {L_W + 81920}")
        a("s_sub_u32 s11, 3, s11")
        self.dma("s[60:63]", 1280, "s8", "s9", "s11", 256, 16384)
        a("v_lshrrev_b32 v62, 1, v1")
        a("v_mul_u32_u24 v62, 144, v62")
        a("v_and_b32 v6, 1, v1")
        a("v_lshl_add_u32 v62, v6, 3, v62")
        a("v_lshl_add_u32 v62, v2, 4, v62")
        a("s_mul_i32 s8, s3, 288")
        a("v_add_u32 v62, s8, v62")
        a("v_lshlrev_b32 v63, 12, v1")
        a("v_lshl_add_u32 v63, v2, 4, v63")
        self.gsync()
        self.tr_reads(64, [L_W + 4096 * i for i in range(20)] + [L_W + 81920 + 8192 * blk + 4096 * i for blk in range(5) for i in range(2)])
        a(f"s_mul_i32 s80, s43, {80*4096}")
        a("s_lshl_b32 s9, s3, 14")
        a("s_add_u32 s80, s80, s9")
        a("s_lshl_b32 s9, s42, 7")
        a("s_add_u32 s80, s80, s9")
        a(f"s_add_u32 s80, s80, {WS_PY}")
        for k in range(1, 4):
            a(f"s_add_u32 s{80+k}, s80, {k*0x10000}")
        a("s_add_u32 s14, s80, 0x40000")
        self.ln_consts()
        a("s_waitcnt lgkmcnt(0)")
        self.stamp(5)
        self.ln_stage()

    def common_addrs(self):
        a = self.a
        a("v_lshrrev_b32 v6, 2, v2")
        a("v_lshl_add_u32 v8, v1, 2, v6")
        a("v_bfe_u32 v7, v8, 1, 2")
        a("v_xor_b32 v7, s3, v7")
        a("v_lshlrev_b32 v8, 7, v8")
        a("v_lshl_add_u32 v8, v7, 5, v8")
        a("v_and_b32 v6, 3, v0")
        a("v_lshl_add_u32 v8, v6, 3, v8")
        a("v_add_u32 v14, 0x10000, v8")
        a("v_add_u32 v15, 0x20000, v8")
        a("v_mul_u32_u24 v9, 144, v1")
        a("v_lshl_add_u32 v9, v3, 4, v9")

    def build(self):
        a = self.a
        self.ws_bytes = 0x2000000 if self.diag else 0x400000
        self.OACC = 4 * 0 + 0
        self.R = min(self.R, 51)
        self.OACC = 48 + 4 * self.R
        hdr = open(os.path.join(os.path.dirname(os.path.abspath(__file__)), "header.txt")).read().rstrip("\n")
        a.raw(hdr)
        a.raw(f"; @launch grid=(256,1,1) block=(512,1,1) lds={LDS_BYTES}")
        a.raw('.amdgcn_target "amdgcn-amd-amdhsa--gfx950"')
        a.raw(".text")
        a.raw(f".globl {NAME}_kernel")
        a.raw(".p2align 8")
        a.raw(f".type {NAME}_kernel,@function")
        a.label(f"{NAME}_kernel")
        a("s_cmp_ge_u32 s2, 256")
        a("s_cbranch_scc1 L_EXIT")
        a("s_load_dwordx16 s[16:31], s[0:1], 0")
        a("s_load_dwordx8 s[32:39], s[0:1], 64")
        a("s_load_dwordx2 s[40:41], s[0:1], 96")
        a("v_lshrrev_b32 v1, 6, v0")
        a("v_and_b32 v0, 63, v0")
        a("v_readfirstlane_b32 s3, v1")
        a("s_lshr_b32 s4, s2, 5")
        a("s_and_b32 s5, s2, 31")
        if self.diag:
            for k in range(8):
                a(f"s_mov_b32 s{84+k}, 0")
        a("s_cmp_lt_u32 s3, 4")
        a("s_cbranch_scc1 L_HELPER")
        self.stream()
        self.helper()
        a.label("L_END")
        if self.diag:
            a("s_mov_b64 exec, -1")
            a("s_lshl_b32 s8, s2, 3")
            a("s_add_u32 s8, s8, s3")
            a("s_lshl_b32 s8, s8, 5")
            a(f"s_add_u32 s8, s8, {WS_STAMP}")
            for k in range(8):
                a(f"v_mov_b32 v{16+k}, s{84+k}")
            a("v_mov_b32 v4, 0")
            a("s_mov_b64 exec, 1")
            a("buffer_store_dwordx4 v[16:19], v4, s[52:55], s8 offen")
            a("buffer_store_dwordx4 v[20:23], v4, s[52:55], s8 offen offset:16")
            a(f"s_cmp_lg_u32 s2, {self.dbgwg}")
            a("s_cbranch_scc1 L_EXIT")
            a("s_and_b32 s8, s3, 3")
            a("s_cmp_lg_u32 s8, 0")
            a("s_cbranch_scc1 L_EXIT")
            self.srd(72, 38, 256)
            a("s_lshl_b32 s8, s3, 3")
            a("buffer_store_dwordx4 v[16:19], v4, s[72:75], s8 offen")
            a("buffer_store_dwordx4 v[20:23], v4, s[72:75], s8 offen offset:16")
        a.label("L_EXIT")
        a("s_endpgm")
        a.raw('.section .rodata,"a"')
        a.raw(".p2align 6")
        a.raw(f".amdhsa_kernel {NAME}_kernel")
        a.raw("  .amdhsa_next_free_vgpr 256")
        a.raw("  .amdhsa_next_free_sgpr 96")
        a.raw("  .amdhsa_accum_offset 256")
        a.raw("  .amdhsa_group_segment_fixed_size 0")
        a.raw("  .amdhsa_kernarg_size 104")
        a.raw("  .amdhsa_user_sgpr_count 2")
        a.raw("  .amdhsa_user_sgpr_kernarg_segment_ptr 1")
        a.raw("  .amdhsa_system_sgpr_workgroup_id_x 1")
        a.raw("  .amdhsa_float_denorm_mode_32 3")
        a.raw(".end_amdhsa_kernel")
        return a.text()


if __name__ == "__main__":
    import argparse
    ap = argparse.ArgumentParser()
    ap.add_argument("-o", default=f"cdna_kernels/{NAME}.s")
    ap.add_argument("--diag", action="store_true")
    ap.add_argument("--set", action="append", default=[])
    args = ap.parse_args()
    kw = {}
    for s in args.set:
        k, v = s.split("=")
        kw[k] = int(v, 0)
    g = Gen(diag=args.diag, **kw)
    open(args.o, "w").write(g.build())
    print("wrote", args.o, "auto nops:", g.a.auto_nops)
```

```python
import sys, os, math, struct
sys.path.insert(0, os.path.dirname(os.path.abspath(__file__)))
from asmlib import Asm

NAME = "adaLN_cond__sliding_block_cached__dense_activation_silu__decode"

WS_EPOCH = 0x0
WS_ARR = 0x400
WS_MG = 0x1000
WS_ML = 0xC000
WS_TAIL = 0x20000
WS_OB = 0x20000
WS_X1 = 0x30000
WS_PA = 0x34000
WS_PY = 0xD4000
WS_TAIL_KB = (0x174000 - 0x20000) // 1024
WS_QP = 0x200000
WS_STAMP = 0x1000000
SENT = 0xFFBFFFBF

C_SYNC, C_QRDY, C_ML, C_O, C_PROG, C_ARR, C_GOK = 0, 4, 8, 12, 16, 20, 24
L_MLX = 64
L_STAT = 128
L_QV = 256
L_OPART = 512
L_HB = 2560
L_ACT = 5120
L_W = 17408
LDS_BYTES = L_W + 120 * 1024


def f2u(x):
    return struct.unpack("<I", struct.pack("<f", x))[0]


class Gen:
    def __init__(self, D=7, R=52, QWAIT=48, trig_mlp=40, trig_wo=60, diag=False, spin=1 << 18, kdelay=180, trig_q=26, t4_sleep=28, trig_gok=72, dbgwg=0, hold=0):
        self.D, self.R, self.QWAIT = D, R, QWAIT
        self.trig_mlp, self.trig_wo = trig_mlp, trig_wo
        self.diag = diag
        self.spin = spin
        self.kdelay = kdelay
        self.trig_q = trig_q
        self.t4_sleep = t4_sleep
        self.trig_gok = trig_gok
        self.dbgwg = dbgwg
        self.hold = hold
        self.a = Asm()

    def srd(self, d, lo, nbytes):
        a = self.a
        a(f"s_mov_b32 s{d}, s{lo}")
        a(f"s_mov_b32 s{d+1}, s{lo+1}")
        a(f"s_mov_b32 s{d+2}, {nbytes}")
        a(f"s_mov_b32 s{d+3}, 0x20000")

    def stamp(self, idx):
        if not self.diag:
            return
        a = self.a
        a("s_memrealtime s[76:77]")
        a("s_waitcnt lgkmcnt(0)")
        a(f"s_mov_b32 s{84+idx}, s76")

    def lds_wait(self, ctl, target, sleep=0, vt="v6"):
        a = self.a
        L = a.newlabel("LW")
        Ld = a.newlabel("LWd")
        a(f"s_mov_b32 s7, {self.spin}")
        a.label(L)
        a(f"ds_read_b32 {vt}, v4 offset:{ctl}")
        a("s_waitcnt lgkmcnt(0)")
        a(f"v_cmp_le_u32 vcc, {target}, {vt}")
        a(f"s_cbranch_vccnz {Ld}")
        if sleep:
            a(f"s_sleep {sleep}")
        a("s_sub_u32 s7, s7, 1")
        a("s_cbranch_scc0 " + L)
        a("s_branch L_END")
        a.label(Ld)

    def lds_inc(self, ctl):
        a = self.a
        a("s_mov_b64 exec, 1")
        a(f"ds_add_u32 v4, v5 offset:{ctl}")
        a("s_mov_b64 exec, -1")

    def gsync(self):
        a = self.a
        a("s_waitcnt vmcnt(0) lgkmcnt(0)")
        self.lds_inc(C_SYNC)
        a("s_add_u32 s15, s15, 4")
        self.lds_wait(C_SYNC, "s15")

    def dma(self, srd, stride, sbase, slds, count, ginc, linc, voff="v12"):
        a = self.a
        a(f"s_mov_b32 s80, {sbase}")
        a(f"s_add_u32 s81, {sbase}, {16*stride-1024}")
        a(f"s_add_u32 s82, {sbase}, {4*stride-2048}")
        a(f"s_add_u32 s83, {sbase}, {20*stride-3072}")
        a(f"s_mov_b32 m0, {slds}")
        a(f"s_mov_b32 s14, {count}")
        a(f"s_mov_b32 s13, {ginc}")
        L = a.newlabel("DMA")
        a.label(L)
        for t in range(4):
            a(f"buffer_load_dwordx4 {voff}, {srd}, s{80+t} offen offset:{1024*t} nt lds")
        a(f"s_add_u32 m0, m0, {linc}")
        for t in range(4):
            a(f"s_add_u32 s{80+t}, s{80+t}, s13")
        a("s_sub_u32 s14, s14, 1")
        a("s_cmp_lg_u32 s14, 0")
        a(f"s_cbranch_scc1 {L}")

    def dma_voff(self, stride):
        a = self.a
        a(f"v_mul_u32_u24 v12, {stride}, v11")
        a("v_add_u32 v12, v12, v10")

    def init_barrier(self, helper):
        a = self.a
        if helper:
            L = a.newlabel("IB")
            a("s_cmp_lg_u32 s3, 0")
            a(f"s_cbranch_scc1 {L}")
            a("v_lshlrev_b32 v6, 2, v0")
            a("s_mov_b64 exec, 0xffff")
            a("ds_write_b32 v6, v4")
            a("s_mov_b64 exec, -1")
            a("s_waitcnt lgkmcnt(0)")
            a.label(L)
        a("s_barrier")

    def clear_tail(self):
        a = self.a
        a(f"v_mov_b32 v16, {SENT:#x}")
        a("v_mov_b32 v17, v16")
        a("v_mov_b32 v18, v16")
        a("v_mov_b32 v19, v16")
        a("v_lshlrev_b32 v6, 4, v0")
        a("s_lshl_b32 s8, s2, 2")
        a("s_add_u32 s8, s8, s3")
        a("s_lshl_b32 s9, s8, 10")
        a(f"s_add_u32 s9, s9, {WS_TAIL}")
        a("buffer_store_dwordx4 v[16:19], v6, s[52:55], s9 offen sc1")
        L = a.newlabel("CL")
        a(f"s_cmp_ge_u32 s8, {WS_TAIL_KB-1024}")
        a(f"s_cbranch_scc1 {L}")
        a("s_add_u32 s9, s9, 0x100000")
        a("buffer_store_dwordx4 v[16:19], v6, s[52:55], s9 offen sc1")
        a.label(L)

    def get_tag(self):
        a = self.a
        a("v_readfirstlane_b32 s12, v13")
        a("s_add_u32 s12, s12, 1")
        a("s_mul_i32 s6, s12, 0x9E3779B1")

    def unpack(self, dst_lo, dst_hi, src):
        a = self.a
        a(f"v_lshlrev_b32 {dst_lo}, 16, {src}")
        a(f"v_and_b32 {dst_hi}, 0xffff0000, {src}")

    def row_allreduce(self, v, op="v_add_f32"):
        a = self.a
        for k in (1, 2, 4, 8):
            a(f"{op}_dpp {v}, {v}, {v} row_ror:{k} row_mask:0xf bank_mask:0xf")

    def silu(self, regs, tmp):
        a = self.a
        for r, t in zip(regs, tmp):
            a(f"v_mul_f32 {t}, {f2u(-math.log2(math.e)):#x}, {r}")
        for r, t in zip(regs, tmp):
            a(f"v_exp_f32 {t}, {t}")
        for r, t in zip(regs, tmp):
            a(f"v_add_f32 {t}, 1.0, {t}")
        for r, t in zip(regs, tmp):
            a(f"v_rcp_f32 {t}, {t}")
        for r, t in zip(regs, tmp):
            a(f"v_mul_f32 {r}, {r}, {t}")

    def tr_reads(self, dst0, offs):
        a = self.a
        n = 0
        for k, off in enumerate(offs):
            for hf in range(2):
                o = off + 2048 * hf
                base = "v8"
                if o >= 131072:
                    base, o = "v15", o - 131072
                elif o >= 65536:
                    base, o = "v14", o - 65536
                r = dst0 + 4 * k + 2 * hf
                a(f"ds_read_b64_tr_b16 v[{r}:{r+1}], {base} offset:{o}")
                n += 1
                if n % 12 == 0:
                    a("s_waitcnt lgkmcnt(4)")

    def gemm640(self, afrag, bbuf, nb, acc):
        a = self.a
        issued = 0
        def issue():
            nonlocal issued
            r = bbuf + 4 * (issued % nb)
            a(f"ds_read_b128 v[{r}:{r+3}], v9 offset:{L_ACT + 576*issued}")
            issued += 1
        depth = min(nb, 12)
        for _ in range(depth):
            issue()
        for i in range(20):
            outstanding_after = issued - i - 1
            a(f"s_waitcnt lgkmcnt({outstanding_after})")
            r = bbuf + 4 * (i % nb)
            c = "0" if i == 0 else f"v[{acc}:{acc+3}]"
            a(f"v_mfma_f32_16x16x32_bf16 v[{acc}:{acc+3}], v[{afrag+4*i}:{afrag+4*i+3}], v[{r}:{r+3}], {c}")
            if issued < 20 and (nb > depth or True):
                issue()

    def reduce_poll(self, base_s, nload_full, tagname):
        a = self.a
        L = a.newlabel("RP")
        Lok = a.newlabel("RPok")
        Lnext = a.newlabel("RPn")
        MK = ["s[44:45]", "s[46:47]", "s[48:49]", "s[50:51]"]
        for k in range(4):
            a(f"s_mov_b64 {MK[k]}, {'0xffffff' if (k == 3 and nload_full == 27) else '-1'}")
        a(f"s_mov_b32 s10, {SENT:#x}")
        a(f"s_mov_b32 s7, {self.spin}")
        a.label(L)
        for k in range(4):
            Ls = a.newlabel("RPk")
            a(f"s_mov_b64 exec, {MK[k]}")
            a(f"s_cbranch_execz {Ls}")
            a(f"buffer_load_dwordx4 v[{24+4*k}:{27+4*k}], v7, s[52:55], {base_s} offen offset:{1024*k} sc1")
            a.label(Ls)
        a("s_mov_b64 exec, -1")
        a("s_waitcnt vmcnt(0)")
        a("v_pk_add_f32 v[40:41], v[24:25], v[28:29]")
        a("v_pk_add_f32 v[42:43], v[26:27], v[30:31]")
        a("v_pk_add_f32 v[44:45], v[32:33], v[36:37]")
        a("v_pk_add_f32 v[46:47], v[34:35], v[38:39]")
        a("v_pk_add_f32 v[40:41], v[40:41], v[44:45]")
        a("v_pk_add_f32 v[42:43], v[42:43], v[46:47]")
        a(f"v_cmp_eq_u32 {MK[0]}, s10, v24")
        a(f"v_cmp_eq_u32 {MK[1]}, s10, v28")
        a("v_permlane32_swap_b32 v40, v42")
        a("v_permlane32_swap_b32 v41, v43")
        a("v_pk_add_f32 v[40:41], v[40:41], v[42:43]")
        a(f"v_cmp_eq_u32 {MK[2]}, s10, v32")
        a(f"v_cmp_eq_u32 {MK[3]}, s10, v36")
        a("v_permlane16_swap_b32 v40, v41")
        a("v_add_f32 v40, v40, v41")
        a(f"s_or_b64 s[8:9], {MK[0]}, {MK[1]}")
        a(f"s_or_b64 s[12:13], {MK[2]}, {MK[3]}")
        a("v_add_f32_dpp v40, v40, v40 row_ror:8 row_mask:0xf bank_mask:0xf")
        a("v_cmp_u_f32 vcc, v40, v40")
        a(f"s_cbranch_vccz {Lok}")
        a("s_or_b64 s[8:9], s[8:9], s[12:13]")
        a(f"s_cbranch_scc1 {Lnext}")
        for k in range(4):
            for r in range(1, 4):
                a(f"v_cmp_eq_u32 vcc, s10, v{24+4*k+r}")
                a(f"s_or_b64 {MK[k]}, {MK[k]}, vcc")
            a(f"s_or_b64 s[8:9], s[8:9], {MK[k]}")
        a("s_cmp_eq_u64 s[8:9], 0")
        a(f"s_cbranch_scc1 {Lok}")
        a.label(Lnext)
        a("s_sub_u32 s7, s7, 1")
        a(f"s_cbranch_scc0 {L}")
        a("s_branch L_END")
        a.label(Lok)

    def pack4_rows(self, v, t, dst):
        a = self.a
        a(f"v_mov_b32 {t}, {v}")
        a(f"v_permlane16_swap_b32 {v}, {t}")
        a(f"v_cvt_pk_bf16_f32 v{dst}, {v}, {t}")
        a(f"v_cvt_pk_bf16_f32 v{dst+1}, {v}, {t}")
        a(f"v_permlane32_swap_b32 v{dst}, v{dst+1}")

    def stream(self):
        a = self.a
        D, R = self.D, self.R
        RB = 48
        quad = lambda i: RB + 4 * (i % R)
        a("s_lshl_b32 s8, s2, 20")
        a("s_add_u32 s8, s8, 0xC0000")
        a("s_lshl_b32 s9, s3, 10")
        a("s_sub_u32 s9, s9, 4096")
        a("v_lshlrev_b32 v1, 4, v0")
        a("s_movk_i32 s11, 0x1000")
        a("s_mov_b32 s10, s9")
        a("s_mov_b32 s46, 0x40000")
        a("s_mov_b32 s47, 0x20000")
        a("s_waitcnt lgkmcnt(0)")
        a("s_add_u32 s44, s18, s8")
        a("s_addc_u32 s45, s19, 0")
        if self.diag:
            self.srd(52, 40, self.ws_bytes)

        def load(i):
            srd = "s[44:47]" if i < 64 else "s[48:51]"
            if i == 64:
                a("s_mov_b32 s10, s9")
            r = quad(i)
            a(f"buffer_load_dwordx4 v[{r}:{r+3}], v1, {srd}, s10 offen nt")
            if i != 63 and i != 127:
                a("s_add_u32 s10, s10, s11")
            if i - 64 == self.trig_mlp or i - 64 == self.trig_wo or i == self.trig_q or i == self.trig_gok:
                L = a.newlabel("TR")
                a("s_cmp_lg_u32 s3, 4")
                a(f"s_cbranch_scc1 {L}")
                self.lds_inc(C_PROG)
                a.label(L)

        a("v_mov_b32 v4, 0")
        a("v_mov_b32 v5, 1")
        a("s_sub_u32 s42, s2, 160")
        a(f"s_cmp_lt_u32 s42, {self.kdelay-160}")
        a("s_cbranch_scc0 L_NODELAY")
        a("s_barrier")
        self.lds_wait(C_SYNC, 1, sleep=1)
        a.label("L_NODELAY")
        for i in range(D):
            load(i)
        a("s_add_u32 s48, s20, s8")
        a("s_addc_u32 s49, s21, 0")
        a("s_mov_b32 s50, 0x40000")
        a("s_mov_b32 s51, 0x20000")
        self.srd(52, 40, self.ws_bytes)
        self.stamp(0)
        a(f"s_cmp_lt_u32 s42, {self.kdelay-160}")
        a("s_cbranch_scc1 L_NOBAR")
        self.init_barrier(False)
        a.label("L_NOBAR")
        a("v_and_b32 v2, 15, v0")
        a("v_and_b32 v3, 1, v0")
        a("v_lshlrev_b32 v3, 4, v3")
        a("v_mov_b32 v6, 0xffff")
        a("v_lshlrev_b32 v6, v3, v6")
        a("v_lshrrev_b32 v3, 1, v2")
        for r in range(4):
            a(f"v_cmp_eq_u32 vcc, {r}, v3")
            a(f"v_cndmask_b32 v{8+r}, 0, v6, vcc")
        a("v_lshlrev_b32 v2, 4, v2")
        state = dict(kdone=0, vdone=0, soft=False)

        def qk_group(gi):
            qs = [quad(4 * gi + l) for l in range(4)]
            for r in range(4):
                for l in range(4):
                    c = "0" if r == 0 else f"v{24+l}"
                    a(f"v_dot2_f32_bf16 v{24+l}, v{qs[l]+r}, v{12+r}, {c}")
            a("v_add_f32_dpp v28, v24, v24 row_ror:8 row_mask:0xf bank_mask:0x3")
            a("v_add_f32_dpp v28, v25, v25 row_ror:8 row_mask:0xf bank_mask:0xc")
            a("v_add_f32_dpp v29, v26, v26 row_ror:8 row_mask:0xf bank_mask:0x3")
            a("v_add_f32_dpp v29, v27, v27 row_ror:8 row_mask:0xf bank_mask:0xc")
            a("v_add_f32_dpp v30, v28, v28 row_half_mirror row_mask:0xf bank_mask:0x5")
            a("v_add_f32_dpp v30, v29, v29 row_half_mirror row_mask:0xf bank_mask:0xa")
            a("v_add_f32_dpp v30, v30, v30 quad_perm:[1,0,3,2] row_mask:0xf bank_mask:0xf")
            a(f"v_add_f32_dpp v{32+gi}, v30, v30 quad_perm:[2,3,0,1] row_mask:0xf bank_mask:0xf")

        def bcast4(v, op, dst):
            for k in range(4):
                a(f"v_readlane_b32 s{76+k}, {v}, {16*k}")
            a(f"v_mov_b32 {dst}, s76")
            for k in range(1, 4):
                a(f"{op} {dst}, s{76+k}, {dst}")

        def softmax():
            cs = f2u(128 ** -0.5 * math.log2(math.e))
            a("v_max3_f32 v24, v32, v33, v34")
            for k in range(35, 47, 2):
                a(f"v_max3_f32 v24, v24, v{k}, v{k+1}")
            a("v_max_f32 v24, v24, v47")
            a("v_max_f32_dpp v24, v24, v24 row_ror:4 row_mask:0xf bank_mask:0xf")
            a("v_max_f32_dpp v24, v24, v24 row_ror:8 row_mask:0xf bank_mask:0xf")
            bcast4("v24", "v_max_f32", "v26")
            a(f"s_mov_b32 s13, {cs:#x}")
            a("v_mul_f32 v26, s13, v26")
            for k in range(16):
                a(f"v_fma_f32 v{32+k}, v{32+k}, s13, -v26")
            for k in range(16):
                a(f"v_exp_f32 v{32+k}, v{32+k}")
            a("v_add_f32 v24, v32, v33")
            a("v_add_f32 v25, v34, v35")
            for k in range(4, 16, 2):
                a(f"v_add_f32 v24, v24, v{32+k}")
                a(f"v_add_f32 v25, v25, v{33+k}")
            a("v_add_f32 v24, v24, v25")
            for k in range(16):
                a(f"v_cvt_pk_bf16_f32 v{32+k}, v{32+k}, v{32+k}")
            a("v_add_f32_dpp v24, v24, v24 row_ror:4 row_mask:0xf bank_mask:0xf")
            a("v_add_f32_dpp v24, v24, v24 row_ror:8 row_mask:0xf bank_mask:0xf")
            bcast4("v24", "v_add_f32", "v27")
            a("s_lshl_b32 s8, s3, 3")
            a("v_mov_b32 v3, s8")
            a("s_mov_b64 exec, 1")
            a(f"ds_write_b64 v3, v[26:27] offset:{L_MLX-32}")
            a(f"ds_add_u32 v4, v5 offset:{C_ML}")
            a("s_mov_b64 exec, -1")
            a("v_mov_b32 v31, v26")

        def factor():
            self.lds_wait(C_ML, 4)
            a(f"ds_read_b128 v[24:27], v4 offset:{L_MLX}")
            a(f"ds_read_b128 v[12:15], v4 offset:{L_MLX+16}")
            a("s_waitcnt lgkmcnt(0)")
            a("v_max3_f32 v28, v24, v26, v12")
            a("v_max_f32 v28, v28, v14")
            for r in ("v24", "v26", "v12", "v14", "v31"):
                a(f"v_sub_f32 {r}, {r}, v28")
            for r in ("v24", "v26", "v12", "v14", "v31"):
                a(f"v_exp_f32 {r}, {r}")
            a("v_mul_f32 v28, v24, v25")
            a("v_fmac_f32 v28, v26, v27")
            a("v_fmac_f32 v28, v12, v13")
            a("v_fmac_f32 v28, v14, v15")
            a("v_rcp_f32 v28, v28")
            a("v_mul_f32 v31, v31, v28")

        BANK = [0, 2, 1, 3]
        def build_a(t):
            A = 16 + 4 * (t & 1)
            for r in range(4):
                a(f"v_and_b32_dpp v{A+r}, v{32+(t>>2)}, v{8+r} row_newbcast:{4*BANK[t&3]} row_mask:0xf bank_mask:0xf")

        def pv(t):
            A = 16 + 4 * (t & 1)
            q = quad(64 + t)
            c = "0" if t == 0 else "v[60:63]"
            return A, q

        OACC = self.OACC
        def pv_mfma(t):
            A = 16 + 4 * (t & 1)
            q = quad(64 + t)
            c = "0" if t == 0 else f"v[{OACC}:{OACC+3}]"
            a(f"v_mfma_f32_16x16x32_bf16 v[{OACC}:{OACC+3}], v[{A}:{A+3}], v[{q}:{q+3}], {c}")

        for i in range(D, self.QWAIT):
            a(f"s_waitcnt vmcnt({D-1})")
            load(i)
        self.stamp(1)
        self.lds_wait(C_QRDY, 1)
        a(f"ds_read_b128 v[12:15], v2 offset:{L_QV}")
        a("s_waitcnt lgkmcnt(0)")
        self.stamp(2)
        fact_at = None
        abuilt = 0
        for i in range(self.QWAIT, 128 + D):
            if i < 128 and i >= R:
                need = i - R
                if need < 64:
                    while state["kdone"] <= need:
                        assert state["kdone"] + 3 <= i - D, "ring too small"
                        qk_group(state["kdone"] // 4)
                        state["kdone"] += 4
                else:
                    assert state["vdone"] > need - 64, "ring too small (V)"
            rem = min(127, i - 1) - (i - D)
            a(f"s_waitcnt vmcnt({rem})")
            if i < 128:
                load(i)
            landed = i - D
            budget = 3
            while state["kdone"] < 64 and state["kdone"] + 3 <= landed and budget > 0:
                qk_group(state["kdone"] // 4)
                state["kdone"] += 4
                budget -= 1
            if state["kdone"] == 64 and not state["soft"]:
                softmax()
                state["soft"] = True
                fact_at = i + 8
                self.stamp(3)
                continue
            if state["soft"]:
                if i == fact_at:
                    factor()
                if i == 64 + 44:
                    self.lds_wait(C_GOK, 1)
                budget = 6
                while state["vdone"] < 64 and 64 + state["vdone"] <= landed and budget > 0:
                    t = state["vdone"]
                    if abuilt <= t:
                        build_a(t)
                        abuilt = t + 1
                    pv_mfma(t)
                    state["vdone"] += 1
                    budget -= 1
                    if t + 1 < 64 and abuilt == t + 1:
                        build_a(t + 1)
                        abuilt = t + 2
        assert state["vdone"] == 64
        self.stamp(4)
        a("v_and_b32 v2, 15, v0")
        a("v_lshlrev_b32 v2, 5, v2")
        a("v_and_b32 v3, 16, v0")
        a("s_lshl_b32 s8, s3, 9")
        a("s_sub_u32 s8, s8, 2048")
        a("v_add3_u32 v2, v2, v3, s8")
        a("v_lshlrev_b32 v3, 4, v0")
        a("v_lshlrev_b32 v6, 3, v0")
        a("s_lshl_b32 s8, s5, 11")
        a("s_lshl_b32 s9, s4, 8")
        a("s_add_u32 s8, s8, s9")
        a(f"s_add_u32 s8, s8, {WS_OB}")
        for r in range(4):
            a(f"v_mul_f32 v{24+r}, v31, v{OACC+r}")
        a("s_mov_b32 exec_hi, 0")
        a(f"ds_write_b128 v2, v[24:27] offset:{L_OPART}")
        a("s_mov_b32 exec_lo, 1")
        a(f"ds_add_rtn_u32 v7, v4, v5 offset:{C_O}")
        a("s_mov_b32 exec_lo, -1")
        a("s_waitcnt lgkmcnt(0)")
        a("v_readfirstlane_b32 s9, v7")
        a("s_cmp_lg_u32 s9, 3")
        a("s_cbranch_scc1 L_SDONE")
        for k in range(4):
            a(f"ds_read_b128 v[{32+4*k}:{35+4*k}], v3 offset:{L_OPART+512*k}")
        a("s_waitcnt lgkmcnt(2)")
        a("v_pk_add_f32 v[32:33], v[32:33], v[36:37]")
        a("v_pk_add_f32 v[34:35], v[34:35], v[38:39]")
        a("s_waitcnt lgkmcnt(0)")
        a("v_pk_add_f32 v[40:41], v[40:41], v[44:45]")
        a("v_pk_add_f32 v[42:43], v[42:43], v[46:47]")
        a("v_pk_add_f32 v[32:33], v[32:33], v[40:41]")
        a("v_pk_add_f32 v[34:35], v[34:35], v[42:43]")
        a("v_cvt_pk_bf16_f32 v32, v32, v33")
        a("v_cvt_pk_bf16_f32 v33, v34, v35")
        a("buffer_store_dwordx2 v[32:33], v6, s[52:55], s8 offen sc1")
        a.label("L_SDONE")
        a("s_mov_b64 exec, -1")
        self.stamp(5)
        self.mlp_role("L_END")
        self.ln_consts()
        a("s_branch L_LN")

    def mlp_role(self, notlabel):
        a = self.a
        a("s_cmp_lt_u32 s2, 192")
        a(f"s_cbranch_scc1 {notlabel}")
        a("s_lshr_b32 s8, s2, 3")
        a("s_and_b32 s43, s8, 1")
        a("s_sub_u32 s8, 31, s8")
        a("s_lshr_b32 s8, s8, 1")
        a("s_lshl_b32 s8, s8, 3")
        a("s_and_b32 s42, s2, 7")
        a("s_add_u32 s42, s42, s8")
        a("s_cmp_ge_u32 s42, 27")
        a(f"s_cbranch_scc1 {notlabel}")

    def ln_consts(self):
        a = self.a
        a("v_lshlrev_b32 v7, 6, v0")
        a("s_lshl_b32 s8, s3, 3")
        a(f"s_add_u32 s8, s8, {WS_ML + 10240}")
        for ch in range(2):
            for k in range(3):
                a(f"s_add_u32 s9, s8, {ch*10240 + k*4096}")
                a(f"buffer_load_dwordx2 v[{40+6*ch+2*k}:{41+6*ch+2*k}], v7, s[52:55], s9 offen sc1")
        a("v_lshrrev_b32 v6, 1, v0")
        a("v_mul_u32_u24 v6, 144, v6")
        a("v_and_b32 v7, 1, v0")
        a("v_lshl_add_u32 v6, v7, 3, v6")
        a("s_lshl_b32 s9, s3, 4")
        a("v_add_u32 v6, s9, v6")
        a("v_lshlrev_b32 v7, 3, v0")
        a("s_mul_i32 s11, s3, 1280")
        a(f"s_add_u32 s11, s11, {WS_X1}")
        a("s_waitcnt vmcnt(0)")
        for k in range(6):
            self.unpack(f"v{28+2*k}", f"v{29+2*k}", f"v{40+k}")
            self.unpack(f"v{16+2*k}", f"v{17+2*k}", f"v{46+k}")
        for k in range(12):
            a(f"v_add_f32 v{16+k}, 1.0, v{16+k}")
        for r in (44, 45, 54, 55, 56, 57):
            a(f"v_mov_b32 v{r}, 0")
        a("v_mov_b32 v2, 0x3f80")
        a("v_mov_b32 v3, 1.0")

    def ln_stage(self):
        a = self.a
        a.label("L_LN")
        L0 = a.newlabel("LNL")
        L = a.newlabel("LNP")
        Lok = a.newlabel("LNok")
        MK = ["s[92:93]", "s[94:95]", "s[78:79]"]
        a(f"s_mov_b32 s7, {self.spin}")
        a(f"s_mov_b32 s10, {SENT:#x}")
        a(f"s_mov_b64 {MK[0]}, -1")
        a(f"s_mov_b64 {MK[1]}, -1")
        a("s_mov_b32 s78, -1")
        a("s_mov_b32 s79, 0")
        a("s_mov_b64 exec, 0xffff")
        a.label(L0)
        a("buffer_load_dwordx2 v[40:41], v7, s[52:55], s11 offen sc1")
        a("s_waitcnt vmcnt(0)")
        a("v_cmp_ne_u32 vcc, s10, v40")
        a(f"s_cbranch_vccnz {L}")
        a("s_sub_u32 s7, s7, 1")
        a(f"s_cbranch_scc0 {L0}")
        a("s_branch L_END")
        a.label(L)
        for k in range(3):
            Ls = a.newlabel("LNk")
            a(f"s_mov_b64 exec, {MK[k]}")
            a(f"s_cbranch_execz {Ls}")
            a(f"buffer_load_dwordx2 v[{40+2*k}:{41+2*k}], v7, s[52:55], s11 offen offset:{512*k} sc1")
            a.label(Ls)
        a("s_mov_b64 exec, -1")
        a("s_waitcnt vmcnt(0)")
        a("v_max3_u32 v58, v40, v41, v42")
        a("v_readfirstlane_b32 s8, v40")
        a("v_max3_u32 v59, v43, v44, v45")
        a("v_max_u32 v58, v58, v59")
        a("v_cmp_le_u32 vcc, s10, v58")
        a(f"s_cbranch_vccz {Lok}")
        a("s_mov_b64 s[12:13], 0")
        for k in range(3):
            a(f"v_cmp_eq_u32 {MK[k]}, s10, v{40+2*k}")
            a(f"v_cmp_eq_u32 vcc, s10, v{41+2*k}")
            a(f"s_or_b64 {MK[k]}, {MK[k]}, vcc")
            a(f"s_or_b64 s[12:13], s[12:13], {MK[k]}")
        a("s_cmp_eq_u64 s[12:13], 0")
        a(f"s_cbranch_scc1 {Lok}")
        a("s_sub_u32 s7, s7, 1")
        a(f"s_cbranch_scc0 {L}")
        a("s_branch L_END")
        a.label(Lok)
        self.stamp(6)
        a("s_lshl_b32 s8, s8, 16")
        a("s_xor_b32 s8, s8, 0x80000000")
        for k in range(4):
            a(f"v_dot2_f32_bf16 v{46+2*k}, v{40+k}, v2, s8")
            a(f"v_dot2_f32_bf16 v{47+2*k}, v{40+k}, v3, s8")
        a("s_mov_b32 exec_hi, 0")
        for k in range(4, 6):
            a(f"v_dot2_f32_bf16 v{46+2*k}, v{40+k}, v2, s8")
            a(f"v_dot2_f32_bf16 v{47+2*k}, v{40+k}, v3, s8")
        a("s_mov_b64 exec, -1")
        a("v_pk_add_f32 v[58:59], v[46:47], v[48:49]")
        a("v_pk_mul_f32 v[60:61], v[46:47], v[46:47]")
        a("v_pk_fma_f32 v[60:61], v[48:49], v[48:49], v[60:61]")
        for k in range(2, 6):
            a(f"v_pk_add_f32 v[58:59], v[58:59], v[{46+2*k}:{47+2*k}]")
            a(f"v_pk_fma_f32 v[60:61], v[{46+2*k}:{47+2*k}], v[{46+2*k}:{47+2*k}], v[60:61]")
        a("v_add_f32 v58, v58, v59")
        a("v_add_f32 v59, v60, v61")
        fill = [f"v_pk_mul_f32 v[{46+2*k}:{47+2*k}], v[{46+2*k}:{47+2*k}], v[{16+2*k}:{17+2*k}]" for k in range(6)]
        a(fill.pop())
        a(fill.pop())
        a("v_permlane16_swap_b32 v58, v59")
        a("v_add_f32 v58, v58, v59")
        for k in (1, 2, 4, 8):
            if fill:
                a(fill.pop())
            a(f"v_add_f32_dpp v58, v58, v58 row_ror:{k} row_mask:0xf bank_mask:0xf")
        for k in range(4):
            a(f"v_readlane_b32 s{76+k}, v58, {16*k}")
        a("v_mov_b32 v60, s76")
        a("v_mov_b32 v61, s77")
        a("v_add_f32 v60, s78, v60")
        a("v_add_f32 v61, s79, v61")
        a(f"v_mul_f32 v60, {f2u(-1/640):#x}, v60")
        a(f"v_mul_f32 v61, {f2u(1/640):#x}, v61")
        a("v_fma_f32 v61, -v60, v60, v61")
        a("v_max_f32 v61, 0, v61")
        a(f"v_add_f32 v61, {f2u(1e-5):#x}, v61")
        a("v_rsq_f32 v61, v61")
        for k in range(6):
            a(f"v_pk_fma_f32 v[{46+2*k}:{47+2*k}], v[{16+2*k}:{17+2*k}], v[60:61], v[{46+2*k}:{47+2*k}] op_sel_hi:[1,0,1]")
        for k in range(6):
            a(f"v_pk_fma_f32 v[{46+2*k}:{47+2*k}], v[{46+2*k}:{47+2*k}], v[60:61], v[{28+2*k}:{29+2*k}] op_sel:[0,1,0] op_sel_hi:[1,1,1]")
        for k in range(6):
            a(f"v_cvt_pk_bf16_f32 v{40+k}, v{46+2*k}, v{47+2*k}")
        a(f"ds_write_b64 v6, v[40:41] offset:{L_ACT}")
        a(f"ds_write_b64 v6, v[42:43] offset:{L_ACT + 32*144}")
        a("s_mov_b32 exec_hi, 0")
        a(f"ds_write_b64 v6, v[44:45] offset:{L_ACT + 64*144}")
        a("s_mov_b64 exec, -1")
        a("s_waitcnt lgkmcnt(0)")
        a("s_barrier")
        a("s_cmp_ge_u32 s3, 4")
        a("s_cbranch_scc1 L_END")
        self.gemm640(64, 184, 18, 40)
        self.silu([f"v{40+r}" for r in range(4)], [f"v{44+r}" for r in range(4)])
        a("v_cvt_pk_bf16_f32 v40, v40, v41")
        a("v_cvt_pk_bf16_f32 v41, v42, v43")
        a("s_mov_b32 exec_lo, 0x00ff00ff")
        a("s_mov_b32 exec_hi, 0x00ff00ff")
        a(f"ds_write_b64 v62, v[40:41] offset:{L_HB}")
        a("s_mov_b64 exec, -1")
        a("s_waitcnt lgkmcnt(0)")
        a("s_barrier")
        a(f"ds_read_b128 v[184:187], v9 offset:{L_HB}")
        a(f"ds_read_b128 v[188:191], v9 offset:{L_HB+576}")
        a("s_waitcnt lgkmcnt(1)")
        for blk in range(5):
            A = 144 + 8 * blk
            a(f"v_mfma_f32_16x16x32_bf16 v[{192+4*blk}:{195+4*blk}], v[{A}:{A+3}], v[184:187], 0")
        a("s_waitcnt lgkmcnt(0)")
        for blk in range(5):
            A = 148 + 8 * blk
            a(f"v_mfma_f32_16x16x32_bf16 v[{192+4*blk}:{195+4*blk}], v[{A}:{A+3}], v[188:191], v[{192+4*blk}:{195+4*blk}]")
        a("s_mov_b32 exec_lo, 0x00ff00ff")
        a("s_mov_b32 exec_hi, 0x00ff00ff")
        for blk in range(5):
            a(f"buffer_store_dwordx4 v[{192+4*blk}:{195+4*blk}], v63, s[52:55], s{80+blk} offen sc1") if blk < 4 else \
                a(f"buffer_store_dwordx4 v[{192+4*blk}:{195+4*blk}], v63, s[52:55], s14 offen sc1")
        a("s_mov_b64 exec, -1")
        self.stamp(7)
        a("s_branch L_END")

    def helper(self):
        a = self.a
        a.label("L_HELPER")
        a("s_setprio 2")
        a("v_mov_b32 v4, 0")
        a("v_mov_b32 v5, 1")
        a("v_lshrrev_b32 v1, 4, v0")
        a("v_and_b32 v2, 15, v0")
        a("v_and_b32 v3, 7, v0")
        a("v_lshlrev_b32 v10, 1, v1")
        a("v_xor_b32 v10, v10, v3")
        a("v_lshlrev_b32 v10, 4, v10")
        a("v_lshrrev_b32 v11, 5, v0")
        a("v_lshlrev_b32 v11, 3, v11")
        a("v_bfe_u32 v6, v0, 3, 2")
        a("v_add_u32 v11, v11, v6")
        a("s_mov_b32 s15, 0")
        a("s_waitcnt lgkmcnt(0)")
        self.srd(52, 40, self.ws_bytes)
        a("buffer_load_dword v13, v4, s[52:55], 0 offen sc1")
        self.stamp(0)
        a("s_cmp_ge_u32 s2, 160")
        a("s_cbranch_scc1 L_HI")
        a("s_and_b32 s8, s2, 7")
        a("s_mul_i32 s8, s8, 20")
        a("s_lshr_b32 s9, s2, 3")
        a("s_add_u32 s8, s8, s9")
        a("s_lshr_b32 s42, s8, 5")
        a("s_and_b32 s43, s8, 31")
        self.srd(56, 22, 640 * 8192)
        self.srd(64, 16, 10240)
        a("v_lshrrev_b32 v6, 5, v0")
        a("v_mul_u32_u24 v6, 1280, v6")
        a("v_and_b32 v7, 31, v0")
        a("v_lshl_add_u32 v6, v7, 3, v6")
        a("s_mul_i32 s8, s3, 2560")
        for k in range(5):
            a(f"buffer_load_dwordx2 v[{20+2*k}:{21+2*k}], v6, s[64:67], s8 offen offset:{256*k}")
        a("v_mul_u32_u24 v6, 1280, v3")
        a("v_lshl_add_u32 v6, v1, 4, v6")
        a("s_lshl_b32 s8, s42, 8")
        a("s_lshl_b32 s9, s3, 6")
        a("s_add_u32 s8, s8, s9")
        a("buffer_load_dwordx4 v[52:55], v6, s[64:67], s8 offen")
        self.dma_voff(8192)
        a("s_lshl_b32 s8, s42, 20")
        a("s_lshl_b32 s9, s3, 18")
        a("s_add_u32 s8, s8, s9")
        a("s_lshl_b32 s9, s43, 8")
        a("s_add_u32 s8, s8, s9")
        a("s_lshl_b32 s9, s3, 12")
        a(f"s_add_u32 s9, s9, {L_W}")
        self.dma("s[56:59]", 8192, "s8", "s9", 2, 128, 16384)
        self.init_barrier(True)
        self.common_addrs()
        a("s_waitcnt vmcnt(9)")
        self.get_tag()
        for k in range(10):
            self.unpack(f"v{30+2*k}", f"v{31+2*k}", f"v{20+k}")
        a("v_pk_add_f32 v[20:21], v[30:31], v[32:33]")
        for k in range(2, 10):
            a(f"v_pk_add_f32 v[20:21], v[20:21], v[{30+2*k}:{31+2*k}]")
        a("v_add_f32 v20, v20, v21")
        self.row_allreduce("v20")
        a("v_mov_b32 v21, v20")
        a("v_permlane16_swap_b32 v20, v21")
        a("v_add_f32 v20, v20, v21")
        a(f"v_mul_f32 v22, {f2u(1/640):#x}, v20")
        for k in range(20):
            a(f"v_sub_f32 v{30+k}, v{30+k}, v22")
        a("v_pk_mul_f32 v[20:21], v[30:31], v[30:31]")
        for k in range(1, 10):
            a(f"v_pk_fma_f32 v[20:21], v[{30+2*k}:{31+2*k}], v[{30+2*k}:{31+2*k}], v[20:21]")
        a("v_add_f32 v20, v20, v21")
        self.row_allreduce("v20")
        a("v_mov_b32 v21, v20")
        a("v_permlane16_swap_b32 v20, v21")
        a("v_add_f32 v20, v20, v21")
        a(f"v_mul_f32 v20, {f2u(1/640):#x}, v20")
        a(f"v_add_f32 v20, {f2u(1e-5):#x}, v20")
        a("v_rsq_f32 v23, v20")
        a("v_lshrrev_b32 v6, 5, v0")
        a("v_lshlrev_b32 v6, 3, v6")
        a("s_lshl_b32 s8, s3, 4")
        a("v_add_u32 v6, s8, v6")
        a("s_mov_b32 exec_lo, 1")
        a("s_mov_b32 exec_hi, 1")
        a(f"ds_write_b64 v6, v[22:23] offset:{L_STAT}")
        a("s_mov_b64 exec, -1")
        self.gsync()
        a("v_lshlrev_b32 v6, 3, v3")
        a(f"ds_read_b64 v[22:23], v6 offset:{L_STAT}")
        for k in range(4):
            self.unpack(f"v{30+2*k}", f"v{31+2*k}", f"v{52+k}")
        a("v_lshrrev_b32 v6, 3, v2")
        a("v_mul_u32_u24 v6, 20480, v6")
        a("v_lshl_add_u32 v6, v1, 8, v6")
        a("v_lshl_add_u32 v6, v3, 4, v6")
        a("s_lshl_b32 s8, s42, 12")
        a("s_lshl_b32 s9, s3, 10")
        a("s_add_u32 s8, s8, s9")
        a(f"s_add_u32 s8, s8, {WS_MG}")
        a("s_waitcnt lgkmcnt(0)")
        for k in range(8):
            a(f"v_sub_f32 v{30+k}, v{30+k}, v22")
        for k in range(8):
            a(f"v_mul_f32 v{30+k}, v{30+k}, v23")
        self.stamp(1)
        L = a.newlabel("MGP")
        Lok = a.newlabel("MGok")
        a(f"s_mov_b32 s7, {self.spin}")
        a.label(L)
        a("buffer_load_dwordx4 v[56:59], v6, s[52:55], s8 offen sc1")
        a("buffer_load_dwordx4 v[60:63], v6, s[52:55], s8 offen offset:128 sc1")
        a("s_waitcnt vmcnt(0)")
        for r in (57, 59, 61, 63):
            a(f"v_xor_b32 v{r}, s6, v{r}")
        a("v_or3_b32 v57, v57, v59, v61")
        a("v_or_b32 v57, v57, v63")
        a("v_cmp_ne_u32 vcc, 0, v57")
        a(f"s_cbranch_vccz {Lok}")
        a("s_sleep 4")
        a("s_sub_u32 s7, s7, 1")
        a(f"s_cbranch_scc0 {L}")
        a("s_branch L_END")
        a.label(Lok)
        self.stamp(2)
        for k in range(4):
            a(f"v_mov_b32_dpp v{57+2*k}, v{56+2*k} row_ror:8 row_mask:0xf bank_mask:0xf")
        for k in range(4):
            self.unpack(f"v{40+2*k}", f"v{41+2*k}", f"v{56+2*k}")
            self.unpack(f"v{20+2*k}", f"v{21+2*k}", f"v{57+2*k}")
        for k in range(8):
            a(f"v_add_f32 v{40+k}, v{40+k}, v{30+k}")
        for k in range(8):
            a(f"v_fmac_f32 v{40+k}, v{30+k}, v{20+k}")
        for k in range(4):
            a(f"v_cvt_pk_bf16_f32 v{48+k}, v{40+2*k}, v{41+2*k}")
        a("s_mul_i32 s8, s3, 576")
        a("v_add_u32 v6, s8, v9")
        a("s_mov_b32 exec_lo, 0x00ff00ff")
        a("s_mov_b32 exec_hi, 0x00ff00ff")
        a(f"ds_write_b128 v6, v[48:51] offset:{L_HB}")
        a("s_mov_b64 exec, -1")
        self.tr_reads(64, [L_W + 16384 * blk + 4096 * i for blk in range(2) for i in range(4)])
        self.gsync()
        for i in range(4):
            a(f"ds_read_b128 v[{96+4*i}:{99+4*i}], v9 offset:{L_HB+576*i}")
        a("v_and_b32 v6, 1, v1")
        a("v_mul_u32_u24 v6, 20480, v6")
        a("v_lshrrev_b32 v7, 1, v1")
        a("v_lshl_add_u32 v6, v7, 9, v6")
        a("v_lshl_add_u32 v6, v2, 3, v6")
        a("s_mul_i32 s8, s43, 40960")
        a("s_lshl_b32 s9, s42, 10")
        a("s_add_u32 s8, s8, s9")
        a("s_lshl_b32 s9, s3, 7")
        a("s_add_u32 s8, s8, s9")
        a(f"s_add_u32 s80, s8, {WS_QP}")
        for r in range(1, 4):
            a(f"s_add_u32 s{80+r}, s80, {5120*r}")
        for r in range(4):
            a(f"v_mov_b32 v{33+2*r}, s6")
        a("v_cmp_le_u32 vcc, 32, v0")
        a("s_waitcnt lgkmcnt(0)")
        for i in range(4):
            for blk in range(2):
                A = 64 + 16 * blk + 4 * i
                c = "0" if i == 0 else f"v[{20+4*blk}:{23+4*blk}]"
                a(f"v_mfma_f32_16x16x32_bf16 v[{20+4*blk}:{23+4*blk}], v[{96+4*i}:{99+4*i}], v[{A}:{A+3}], {c}")
        for r in range(4):
            a(f"v_cndmask_b32 v{32+2*r}, v{20+r}, v{24+r}, vcc")
        for r in range(4):
            a(f"buffer_store_dwordx2 v[{32+2*r}:{33+2*r}], v6, s[52:55], s{80+r} offen sc1")
        self.stamp(3)
        a("s_branch L_ARRIVE")

        a.label("L_HI")
        a("s_cmp_ge_u32 s2, 220")
        a("s_cbranch_scc1 L_NOROLE")
        a("s_sub_u32 s42, s2, 160")
        self.srd(56, 34, 640 * 7680)
        self.srd(64, 32, 10240)
        a("v_lshlrev_b32 v6, 3, v0")
        a("s_mul_i32 s8, s3, 2560")
        for k in range(5):
            a(f"buffer_load_dwordx2 v[{20+2*k}:{21+2*k}], v6, s[64:67], s8 offen offset:{512*k}")
        self.dma_voff(7680)
        a(f"s_mul_i32 s8, s3, {160*7680}")
        a("s_lshl_b32 s9, s42, 7")
        a("s_add_u32 s8, s8, s9")
        a("s_mul_i32 s9, s3, 20480")
        a(f"s_add_u32 s9, s9, {L_W}")
        self.dma("s[56:59]", 7680, "s8", "s9", 5, 32 * 7680, 4096)
        self.init_barrier(True)
        self.common_addrs()
        for k in range(5):
            t = f"v{50+k}"
            a(f"v_add_u32 v6, {64*k}, v0")
            a("v_cmp_le_u32 vcc, 160, v6")
            a("v_subrev_u32 v7, 160, v6")
            a("v_cndmask_b32 v6, v6, v7, vcc")
            a("v_cndmask_b32 v7, 0, v5, vcc")
            a(f"v_lshrrev_b32 {t}, 1, v6")
            a(f"v_mul_u32_u24 {t}, 144, {t}")
            a("v_and_b32 v6, 1, v6")
            a(f"v_lshl_add_u32 {t}, v6, 3, {t}")
            a(f"v_lshl_add_u32 {t}, v7, 4, {t}")
            a("s_lshl_b32 s8, s3, 5")
            a(f"v_add_u32 {t}, s8, {t}")
        a("s_waitcnt vmcnt(20)")
        self.get_tag()
        for k in range(10):
            self.unpack(f"v{30+2*k}", f"v{31+2*k}", f"v{20+k}")
        self.silu([f"v{30+k}" for k in range(20)], [f"v{64+k}" for k in range(20)])
        for k in range(10):
            a(f"v_cvt_pk_bf16_f32 v{20+k}, v{30+2*k}, v{31+2*k}")
        for k in range(5):
            a(f"ds_write_b64 v{50+k}, v[{20+2*k}:{21+2*k}] offset:{L_ACT}")
        self.gsync()
        self.stamp(1)
        self.tr_reads(64, [L_W + 4096 * i for i in range(20)])
        a("s_waitcnt lgkmcnt(0)")
        self.gemm640(64, 184, 18, 40)
        a("s_mul_i32 s8, s42, 205")
        a("s_lshr_b32 s8, s8, 11")
        a("s_mul_i32 s9, s8, 10")
        a("s_sub_u32 s9, s42, s9")
        a("s_lshl_b32 s9, s9, 2")
        a("s_add_u32 s9, s9, s3")
        a("v_cvt_pk_bf16_f32 v44, v40, v41")
        a("v_cvt_pk_bf16_f32 v46, v42, v43")
        a("s_mov_b32 exec_lo, 0x00ff00ff")
        a("s_mov_b32 exec_hi, 0x00ff00ff")
        a("s_cmp_ge_u32 s8, 2")
        a("s_cbranch_scc1 L_MODLATE")
        a("v_mov_b32 v45, s6")
        a("v_mov_b32 v47, s6")
        a("v_lshlrev_b32 v6, 7, v1")
        a("v_lshl_add_u32 v6, v2, 4, v6")
        a("s_mul_i32 s8, s8, 20480")
        a("s_lshl_b32 s9, s9, 9")
        a("s_add_u32 s8, s8, s9")
        a(f"s_add_u32 s8, s8, {WS_MG}")
        a("buffer_store_dwordx4 v[44:47], v6, s[52:55], s8 offen sc1")
        a("s_mov_b64 exec, -1")
        self.stamp(3)
        a("s_branch L_ARRIVE")
        a.label("L_MODLATE")
        a("v_mov_b32 v45, v46")
        a("v_lshlrev_b32 v6, 6, v1")
        a("v_lshl_add_u32 v6, v2, 3, v6")
        a("s_mul_i32 s8, s8, 10240")
        a("s_lshl_b32 s9, s9, 8")
        a("s_add_u32 s8, s8, s9")
        a(f"s_add_u32 s8, s8, {WS_ML - 20480}")
        a("buffer_store_dwordx2 v[44:45], v6, s[52:55], s8 offen sc1")
        a("s_mov_b64 exec, -1")
        a("s_branch L_ARRIVE")

        a.label("L_NOROLE")
        self.init_barrier(True)
        self.common_addrs()
        a("s_waitcnt vmcnt(0)")
        self.get_tag()

        a.label("L_ARRIVE")
        self.clear_tail()
        a("s_waitcnt vmcnt(0)")
        a("s_mov_b64 exec, 1")
        a(f"ds_add_rtn_u32 v6, v4, v5 offset:{C_ARR}")
        a("s_waitcnt lgkmcnt(0)")
        a("v_readfirstlane_b32 s8, v6")
        a("s_cmp_lg_u32 s8, 3")
        a("s_cbranch_scc1 L_ARR2")
        a("v_mov_b32 v6, s6")
        a("s_lshl_b32 s8, s2, 2")
        a(f"buffer_store_dword v6, v4, s[52:55], s8 offen offset:{WS_ARR} sc1")
        a.label("L_ARR2")
        a("s_mov_b64 exec, -1")
        a("s_cmp_eq_u32 s3, 1")
        a("s_cbranch_scc1 L_QGATHER")
        a("s_cmp_eq_u32 s3, 0")
        a("s_cbranch_scc0 L_TAILROLE")
        self.lds_wait(C_PROG, 2, sleep=8)
        L = a.newlabel("GP")
        Lok = a.newlabel("GPok")
        a("v_lshlrev_b32 v7, 4, v0")
        a(f"s_mov_b32 s7, {self.spin}")
        a.label(L)
        a(f"buffer_load_dwordx4 v[20:23], v7, s[52:55], 0 offen offset:{WS_ARR} sc1")
        a("s_waitcnt vmcnt(0)")
        for r in range(20, 24):
            a(f"v_xor_b32 v{r}, s6, v{r}")
        a("v_or3_b32 v20, v20, v21, v22")
        a("v_or_b32 v20, v20, v23")
        a("v_cmp_ne_u32 vcc, 0, v20")
        a(f"s_cbranch_vccz {Lok}")
        a("s_sleep 32")
        a("s_sub_u32 s7, s7, 1")
        a(f"s_cbranch_scc0 {L}")
        a("s_branch L_END")
        a.label(Lok)
        self.lds_inc(C_GOK)
        self.stamp(4)
        a("s_cmp_lg_u32 s2, 0")
        a("s_cbranch_scc1 L_TAILROLE")
        a("v_mov_b32 v6, s12")
        a("s_mov_b64 exec, 1")
        a(f"buffer_store_dword v6, v4, s[52:55], 0 offen offset:{WS_EPOCH} sc1")
        a("s_mov_b64 exec, -1")
        a("s_branch L_TAILROLE")

        a.label("L_QGATHER")
        a("v_lshlrev_b32 v6, 4, v0")
        a("s_lshl_b32 s8, s5, 3")
        a("s_add_u32 s8, s8, s4")
        a("s_mul_i32 s8, s8, 5120")
        a(f"s_add_u32 s8, s8, {WS_QP}")
        a("s_add_u32 s9, s8, 4096")
        self.lds_wait(C_PROG, 1, sleep=2, vt="v7")
        L = a.newlabel("QG")
        MK = ["s[44:45]", "s[46:47]", "s[48:49]", "s[50:51]", "s[92:93]"]
        Lok = a.newlabel("QGok")
        for k in range(5):
            a(f"s_mov_b64 {MK[k]}, -1")
        a(f"s_mov_b32 s7, {self.spin}")
        a.label(L)
        for k in range(5):
            Ls = a.newlabel("QGs")
            a(f"s_mov_b64 exec, {MK[k]}")
            a(f"s_cbranch_execz {Ls}")
            if k < 4:
                a(f"buffer_load_dwordx4 v[{20+4*k}:{23+4*k}], v6, s[52:55], s8 offen offset:{1024*k} sc1")
            else:
                a("buffer_load_dwordx4 v[36:39], v6, s[52:55], s9 offen sc1")
            a.label(Ls)
        a("s_mov_b64 exec, -1")
        a("s_waitcnt vmcnt(0)")
        a("s_mov_b64 s[10:11], 0")
        for k in range(5):
            a(f"v_cmp_ne_u32 {MK[k]}, s6, v{21+4*k}")
            a(f"v_cmp_ne_u32 vcc, s6, v{23+4*k}")
            a(f"s_or_b64 {MK[k]}, {MK[k]}, vcc")
            a(f"s_or_b64 s[10:11], s[10:11], {MK[k]}")
        a("s_cmp_eq_u64 s[10:11], 0")
        a(f"s_cbranch_scc1 {Lok}")
        a("s_sleep 2")
        a("s_sub_u32 s7, s7, 1")
        a(f"s_cbranch_scc0 {L}")
        a("s_branch L_END")
        a.label(Lok)
        for k in range(1, 5):
            a(f"v_add_f32 v20, v20, v{20+4*k}")
            a(f"v_add_f32 v22, v22, v{22+4*k}")
        a("v_cvt_pk_bf16_f32 v20, v20, v22")
        a("v_lshlrev_b32 v6, 2, v0")
        a(f"ds_write_b32 v6, v20 offset:{L_QV}")
        self.lds_inc(C_QRDY)
        self.stamp(4)

        a.label("L_TAILROLE")
        a("s_cmp_ge_u32 s2, 160")
        a("s_cbranch_scc1 L_TAILHI")
        self.srd(56, 24, 4096 * 1280)
        self.srd(64, 16, 10240)
        self.srd(68, 36, 10240)
        self.lds_wait(C_GOK, 1, sleep=8)
        a("v_lshrrev_b32 v6, 1, v1")
        a("v_lshlrev_b32 v6, 2, v6")
        a("v_lshl_add_u32 v7, v3, 3, v6")
        a("s_lshl_b32 s8, s2, 6")
        a(f"s_add_u32 s8, s8, {WS_ML}")
        a("s_add_u32 s9, s8, 30720")
        a("buffer_load_dword v49, v7, s[52:55], s8 offen sc1")
        a("buffer_load_dword v50, v7, s[52:55], s9 offen sc1")
        a("v_mul_u32_u24 v51, 1280, v3")
        a("v_add_u32 v7, v51, v6")
        a("s_lshl_b32 s42, s2, 3")
        a("buffer_load_dword v48, v7, s[64:67], s42 offen")
        a("buffer_load_dword v52, v7, s[68:71], s42 offen")
        a("v_and_b32 v6, 1, v1")
        a("v_lshlrev_b32 v6, 4, v6")
        a("v_sub_u32 v6, 16, v6")
        self.dma_voff(1280)
        a("s_waitcnt vmcnt(0)")
        for r in (48, 49, 50):
            a(f"v_lshlrev_b32 v{r}, v6, v{r}")
            a(f"v_and_b32 v{r}, 0xffff0000, v{r}")
        for r in range(36, 40):
            a(f"v_mov_b32 v{r}, 0")
        a(f"s_mul_i32 s8, s5, {128*1280}")
        a(f"s_mul_i32 s9, s3, {32*1280}")
        a("s_add_u32 s8, s8, s9")
        a("s_lshl_b32 s9, s4, 8")
        a("s_add_u32 s8, s8, s9")
        a("s_lshl_b32 s9, s3, 12")
        a(f"s_add_u32 s9, s9, {L_W + 32768}")
        self.lds_wait(C_PROG, 4, sleep=2)
        self.dma("s[56:59]", 1280, "s8", "s9", 2, 128, 16384)
        a("v_mul_u32_u24 v53, 144, v2")
        a("v_lshl_add_u32 v53, v1, 4, v53")
        a("s_lshl_b32 s9, s3, 5")
        a("v_add_u32 v53, s9, v53")
        a("v_lshlrev_b32 v54, 12, v1")
        a("v_lshl_add_u32 v54, v2, 4, v54")
        a("v_lshlrev_b32 v7, 4, v0")
        a("s_lshl_b32 s11, s5, 11")
        a("s_lshl_b32 s9, s3, 9")
        a("s_add_u32 s11, s11, s9")
        a(f"s_add_u32 s11, s11, {WS_OB}")
        a("s_lshl_b32 s80, s4, 17")
        a("s_lshl_b32 s9, s3, 14")
        a("s_add_u32 s80, s80, s9")
        a("s_lshl_b32 s9, s5, 7")
        a("s_add_u32 s80, s80, s9")
        a(f"s_add_u32 s80, s80, {WS_PA}")
        a("s_add_u32 s81, s80, 0x10000")
        a("s_lshl_b32 s82, s2, 12")
        a(f"s_add_u32 s83, s82, {WS_PY}")
        a(f"s_add_u32 s82, s82, {WS_PA}")
        a(f"s_add_u32 s43, s42, {WS_X1}")
        self.gsync()
        self.tr_reads(64, [L_W + 32768 + 16384 * blk + 4096 * i for blk in range(2) for i in range(4)])
        a("s_waitcnt lgkmcnt(0)")
        self.stamp(5)
        self.lds_wait(C_O, 1)
        L = a.newlabel("OBP")
        Lok = a.newlabel("OBok")
        a(f"s_mov_b32 s7, {self.spin}")
        a(f"s_mov_b32 s10, {SENT:#x}")
        a("s_mov_b32 exec_hi, 0")
        a.label(L)
        a("buffer_load_dwordx4 v[96:99], v7, s[52:55], s11 offen sc1")
        a("s_waitcnt vmcnt(0)")
        a("v_max3_u32 v100, v96, v97, v98")
        a("v_max_u32 v100, v100, v99")
        a("v_cmp_le_u32 vcc, s10, v100")
        a(f"s_cbranch_vccz {Lok}")
        a("v_cmp_eq_u32 s[8:9], s10, v96")
        for r in range(97, 100):
            a(f"v_cmp_eq_u32 vcc, s10, v{r}")
            a("s_or_b64 s[8:9], s[8:9], vcc")
        a("s_cmp_eq_u64 s[8:9], 0")
        a(f"s_cbranch_scc1 {Lok}")
        a("s_mov_b64 exec, s[8:9]")
        a("s_sub_u32 s7, s7, 1")
        a(f"s_cbranch_scc0 {L}")
        a("s_branch L_END")
        a.label(Lok)
        a("s_mov_b32 exec_lo, -1")
        a(f"ds_write_b128 v53, v[96:99] offset:{L_HB}")
        a("s_mov_b32 exec_hi, -1")
        a("s_waitcnt lgkmcnt(0)")
        a("s_barrier")
        for i in range(4):
            a(f"ds_read_b128 v[{96+4*i}:{99+4*i}], v9 offset:{L_HB+576*i}")
        for i in range(4):
            a(f"s_waitcnt lgkmcnt({3-i})")
            for blk in range(2):
                A = 64 + 16 * blk + 4 * i
                c = "0" if i == 0 else f"v[{112+4*blk}:{115+4*blk}]"
                a(f"v_mfma_f32_16x16x32_bf16 v[{112+4*blk}:{115+4*blk}], v[{A}:{A+3}], v[{96+4*i}:{99+4*i}], {c}")
        a("s_mov_b32 exec_lo, 0x00ff00ff")
        a("s_mov_b32 exec_hi, 0x00ff00ff")
        a("buffer_store_dwordx4 v[112:115], v54, s[52:55], s80 offen sc1")
        a("buffer_store_dwordx4 v[116:119], v54, s[52:55], s81 offen sc1")
        a("s_mov_b64 exec, -1")
        self.stamp(6)
        a("s_cmp_lg_u32 s3, 0")
        a("s_cbranch_scc1 L_END")
        self.reduce_poll("s82", 32, "T2")
        a("v_fma_f32 v40, v49, v40, v48")
        a("v_mov_b32 v48, v40")
        self.pack4_rows("v40", "v41", 42)
        a("s_mov_b64 exec, 0xff")
        a("buffer_store_dwordx2 v[42:43], v51, s[52:55], s43 offen sc1")
        a("s_mov_b64 exec, -1")
        self.stamp(7)
        a("v_cvt_pk_bf16_f32 v48, v48, v48")
        a("v_and_b32 v48, 0xffff0000, v48")
        for r in range(36, 40):
            a(f"v_mov_b32 v{r}, 0")
        if self.t4_sleep:
            a(f"s_sleep {self.t4_sleep}")
        self.reduce_poll("s83", 27, "T4")
        a("v_fma_f32 v40, v50, v40, v48")
        self.pack4_rows("v40", "v41", 42)
        a("s_mov_b64 exec, 0xff")
        a("buffer_store_dwordx2 v[42:43], v51, s[68:71], s42 offen")
        a("s_mov_b64 exec, -1")
        self.stamp(3)
        a("s_branch L_END")

        a.label("L_TAILHI")
        self.mlp_role("L_END")
        self.srd(56, 28, 640 * 3456)
        self.srd(60, 30, 1728 * 1280)
        self.lds_wait(C_GOK, 1, sleep=8)
        self.lds_wait(C_PROG, 3, sleep=2)
        self.dma_voff(3456)
        a(f"s_mul_i32 s8, s3, {160*3456}")
        a("s_lshl_b32 s9, s42, 7")
        a("s_add_u32 s8, s8, s9")
        a("s_mul_i32 s9, s3, 20480")
        a(f"s_add_u32 s9, s9, {L_W}")
        self.dma("s[56:59]", 3456, "s8", "s9", 5, 32 * 3456, 4096)
        self.dma_voff(1280)
        a("s_and_b32 s10, s3, 1")
        a("s_lshr_b32 s11, s3, 1")
        a(f"s_mul_i32 s8, s42, {64*1280}")
        a(f"s_mul_i32 s9, s10, {32*1280}")
        a("s_add_u32 s8, s8, s9")
        a("s_mul_i32 s9, s43, 640")
        a("s_add_u32 s8, s8, s9")
        a("s_lshl_b32 s9, s11, 7")
        a("s_add_u32 s8, s8, s9")
        a("s_lshl_b32 s9, s11, 13")
        a("s_lshl_b32 s10, s10, 12")
        a("s_add_u32 s9, s9, s10")
        a(f"s_add_u32 s9, s9, {L_W + 81920}")
        a("s_sub_u32 s11, 3, s11")
        self.dma("s[60:63]", 1280, "s8", "s9", "s11", 256, 16384)
        a("v_lshrrev_b32 v62, 1, v1")
        a("v_mul_u32_u24 v62, 144, v62")
        a("v_and_b32 v6, 1, v1")
        a("v_lshl_add_u32 v62, v6, 3, v62")
        a("v_lshl_add_u32 v62, v2, 4, v62")
        a("s_mul_i32 s8, s3, 288")
        a("v_add_u32 v62, s8, v62")
        a("v_lshlrev_b32 v63, 12, v1")
        a("v_lshl_add_u32 v63, v2, 4, v63")
        self.gsync()
        self.tr_reads(64, [L_W + 4096 * i for i in range(20)] + [L_W + 81920 + 8192 * blk + 4096 * i for blk in range(5) for i in range(2)])
        a(f"s_mul_i32 s80, s43, {80*4096}")
        a("s_lshl_b32 s9, s3, 14")
        a("s_add_u32 s80, s80, s9")
        a("s_lshl_b32 s9, s42, 7")
        a("s_add_u32 s80, s80, s9")
        a(f"s_add_u32 s80, s80, {WS_PY}")
        for k in range(1, 4):
            a(f"s_add_u32 s{80+k}, s80, {k*0x10000}")
        a("s_add_u32 s14, s80, 0x40000")
        self.ln_consts()
        a("s_waitcnt lgkmcnt(0)")
        self.stamp(5)
        self.ln_stage()

    def common_addrs(self):
        a = self.a
        a("v_lshrrev_b32 v6, 2, v2")
        a("v_lshl_add_u32 v8, v1, 2, v6")
        a("v_bfe_u32 v7, v8, 1, 2")
        a("v_xor_b32 v7, s3, v7")
        a("v_lshlrev_b32 v8, 7, v8")
        a("v_lshl_add_u32 v8, v7, 5, v8")
        a("v_and_b32 v6, 3, v0")
        a("v_lshl_add_u32 v8, v6, 3, v8")
        a("v_add_u32 v14, 0x10000, v8")
        a("v_add_u32 v15, 0x20000, v8")
        a("v_mul_u32_u24 v9, 144, v1")
        a("v_lshl_add_u32 v9, v3, 4, v9")

    def build(self):
        a = self.a
        self.ws_bytes = 0x2000000 if self.diag else 0x400000
        self.OACC = 4 * 0 + 0
        self.R = min(self.R, 51)
        self.OACC = 48 + 4 * self.R
        hdr = open(os.path.join(os.path.dirname(os.path.abspath(__file__)), "header.txt")).read().rstrip("\n")
        a.raw(hdr)
        a.raw(f"; @launch grid=(256,1,1) block=(512,1,1) lds={LDS_BYTES}")
        a.raw('.amdgcn_target "amdgcn-amd-amdhsa--gfx950"')
        a.raw(".text")
        a.raw(f".globl {NAME}_kernel")
        a.raw(".p2align 8")
        a.raw(f".type {NAME}_kernel,@function")
        a.label(f"{NAME}_kernel")
        a("s_cmp_ge_u32 s2, 256")
        a("s_cbranch_scc1 L_EXIT")
        a("s_load_dwordx16 s[16:31], s[0:1], 0")
        a("s_load_dwordx8 s[32:39], s[0:1], 64")
        a("s_load_dwordx2 s[40:41], s[0:1], 96")
        a("v_lshrrev_b32 v1, 6, v0")
        a("v_and_b32 v0, 63, v0")
        a("v_readfirstlane_b32 s3, v1")
        a("s_lshr_b32 s4, s2, 5")
        a("s_and_b32 s5, s2, 31")
        if self.diag:
            for k in range(8):
                a(f"s_mov_b32 s{84+k}, 0")
        a("s_cmp_lt_u32 s3, 4")
        a("s_cbranch_scc1 L_HELPER")
        self.stream()
        self.helper()
        a.label("L_END")
        if self.diag:
            a("s_mov_b64 exec, -1")
            a("s_lshl_b32 s8, s2, 3")
            a("s_add_u32 s8, s8, s3")
            a("s_lshl_b32 s8, s8, 5")
            a(f"s_add_u32 s8, s8, {WS_STAMP}")
            for k in range(8):
                a(f"v_mov_b32 v{16+k}, s{84+k}")
            a("v_mov_b32 v4, 0")
            a("s_mov_b64 exec, 1")
            a("buffer_store_dwordx4 v[16:19], v4, s[52:55], s8 offen")
            a("buffer_store_dwordx4 v[20:23], v4, s[52:55], s8 offen offset:16")
            a(f"s_cmp_lg_u32 s2, {self.dbgwg}")
            a("s_cbranch_scc1 L_EXIT")
            a("s_and_b32 s8, s3, 3")
            a("s_cmp_lg_u32 s8, 0")
            a("s_cbranch_scc1 L_EXIT")
            if self.hold:
                a.label("L_HOLD")
                a("s_memrealtime s[76:77]")
                a("s_waitcnt lgkmcnt(0)")
                a("s_sub_u32 s8, s76, s84")
                a(f"s_cmp_lt_u32 s8, {self.hold}")
                a("s_cbranch_scc1 L_HOLD")
            self.srd(72, 38, 256)
            a("s_lshl_b32 s8, s3, 3")
            a("buffer_store_dwordx4 v[16:19], v4, s[72:75], s8 offen")
            a("buffer_store_dwordx4 v[20:23], v4, s[72:75], s8 offen offset:16")
        a.label("L_EXIT")
        a("s_endpgm")
        a.raw('.section .rodata,"a"')
        a.raw(".p2align 6")
        a.raw(f".amdhsa_kernel {NAME}_kernel")
        a.raw("  .amdhsa_next_free_vgpr 256")
        a.raw("  .amdhsa_next_free_sgpr 96")
        a.raw("  .amdhsa_accum_offset 256")
        a.raw("  .amdhsa_group_segment_fixed_size 0")
        a.raw("  .amdhsa_kernarg_size 104")
        a.raw("  .amdhsa_user_sgpr_count 2")
        a.raw("  .amdhsa_user_sgpr_kernarg_segment_ptr 1")
        a.raw("  .amdhsa_system_sgpr_workgroup_id_x 1")
        a.raw("  .amdhsa_float_denorm_mode_32 3")
        a.raw(".end_amdhsa_kernel")
        return a.text()


if __name__ == "__main__":
    import argparse
    ap = argparse.ArgumentParser()
    ap.add_argument("-o", default=f"cdna_kernels/{NAME}.s")
    ap.add_argument("--diag", action="store_true")
    ap.add_argument("--set", action="append", default=[])
    args = ap.parse_args()
    kw = {}
    for s in args.set:
        k, v = s.split("=")
        kw[k] = int(v, 0)
    g = Gen(diag=args.diag, **kw)
    open(args.o, "w").write(g.build())
    print("wrote", args.o, "auto nops:", g.a.auto_nops)
```

```python
import json
NAME = "adaLN_cond__sliding_block_cached__dense_activation_silu__decode"
HDR = lambda blk, lds=0: [f"; @launch grid=(256,1,1) block=({blk},1,1) lds={lds}", '.amdgcn_target "amdgcn-amd-amdhsa--gfx950"', ".text",
      f".globl {NAME}_kernel", ".p2align 8", f".type {NAME}_kernel,@function", f"{NAME}_kernel:"]
FTR = lambda nv=64: ['.section .rodata,"a"', ".p2align 6", f".amdhsa_kernel {NAME}_kernel", f"  .amdhsa_next_free_vgpr {nv}",
      "  .amdhsa_next_free_sgpr 96", f"  .amdhsa_accum_offset {nv}", "  .amdhsa_group_segment_fixed_size 0", "  .amdhsa_kernarg_size 104",
      "  .amdhsa_user_sgpr_count 2", "  .amdhsa_user_sgpr_kernarg_segment_ptr 1", "  .amdhsa_system_sgpr_workgroup_id_x 1", ".end_amdhsa_kernel"]

def gen(stride=1, sf="sc1", lf="sc1", pipe=1, width="x2", atomic=False, gap=0):
    L = HDR(64, 100*1024)
    A = L.append
    A("  s_cmp_ge_u32 s2, 256")
    A("  s_cbranch_scc1 L_end")
    A("  s_load_dwordx2 s[8:9], s[0:1], 96")
    lg = {1: 0, 8: 3}[stride]
    A(f"  s_lshr_b32 s20, s2, {lg}")
    A(f"  s_lshl_b32 s21, s20, {lg}")
    A("  s_cmp_lg_u32 s21, s2")
    A("  s_cbranch_scc1 L_end")
    A("  s_cmp_ge_u32 s20, 32")
    A("  s_cbranch_scc1 L_end")
    A("  s_waitcnt lgkmcnt(0)")
    A("  s_mov_b32 s12, s8")
    A("  s_mov_b32 s13, s9")
    A("  s_mov_b32 s14, 0x2000000")
    A("  s_mov_b32 s15, 0x20000")
    nb = {"x2": 8, "x4": 16}[width]
    A(f"  v_mul_u32_u24 v1, {nb}, v0")
    A("  s_lshl_b32 s22, s20, 12")
    A("  s_add_u32 s23, s22, 4096")
    for r in range(4): A(f"  v_mov_b32 v{4+r}, 1")
    A("  s_cmp_eq_u32 s20, 0")
    A("  s_cbranch_scc0 L_poll")
    for _ in range(3): A("  s_sleep 127")
    A("  s_branch L_go")
    A("L_poll:")
    A("  s_mov_b32 s30, 100000")
    nr = nb // 4
    def ld(k): A(f"  buffer_load_dword{width} v[{8+4*k}:{8+4*k+nr-1}], v1, s[12:15], s22 offen {lf}")
    for k in range(pipe - 1):
        ld(k)
        for _ in range(gap): A("  s_nop 15")
    A("L_loop:")
    for j in range(pipe):
        ld((j + pipe - 1) % pipe)
        A(f"  s_waitcnt vmcnt({pipe-1})")
        A(f"  v_cmp_ne_u32 vcc, 1, v{8+4*j+1}")
        A("  s_cbranch_vccz L_go")
        for _ in range(gap): A("  s_nop 15")
    A("  s_sub_u32 s30, s30, 1")
    A("  s_cmp_lg_u32 s30, 0")
    A("  s_cbranch_scc1 L_loop")
    A("L_go:")
    A(f"  buffer_store_dword{width} v[4:{4+nr-1}], v1, s[12:15], s23 offen {sf}")
    A("  s_memrealtime s[40:41]")
    A("  s_waitcnt lgkmcnt(0) vmcnt(0)")
    A("  s_memrealtime s[42:43]")
    A("  s_waitcnt lgkmcnt(0)")
    A("  v_mov_b32 v4, s40")
    A("  v_mov_b32 v5, s42")
    A("  s_lshl_b32 s21, s20, 3")
    A("  s_add_u32 s21, s21, 0x1000000")
    A("  v_mov_b32 v3, s21")
    A("  v_cmp_eq_u32 vcc, 0, v0")
    A("  s_and_saveexec_b64 s[32:33], vcc")
    A("  buffer_store_dwordx2 v[4:5], v3, s[12:15], 0 offen")
    A("L_end:")
    A("  s_endpgm")
    return "\n".join(L + FTR()) + "\n"

if __name__ == "__main__":
    outs = []
    cfgs = [
        dict(stride=1), dict(stride=8), dict(stride=1, pipe=2), dict(stride=1, pipe=4), dict(stride=1, pipe=4, gap=2), dict(stride=1, pipe=8, gap=1),
        dict(stride=1, sf="sc0 sc1", lf="sc0 sc1"), dict(stride=1, sf="sc0 sc1", lf="sc0 sc1", pipe=4),
        dict(stride=8, sf="", lf="sc1"), dict(stride=8, sf="", lf="sc1", pipe=4), dict(stride=8, sf="sc0", lf="sc1"), dict(stride=8, sf="", lf="nt"),
        dict(stride=8, pipe=4), dict(stride=1, width="x4"), dict(stride=1, width="x4", pipe=4), dict(stride=8, sf="", lf="sc0"),
    ]
    for c in cfgs:
        nm = "hop_" + "_".join(f"{k}{str(v).replace(' ','')}" for k, v in c.items())
        open(f"exp/{nm}.s", "w").write(gen(**c))
        outs.append(f"exp/{nm}.s")
    print(json.dumps(outs))
```

```python
import json, sys
sys.path.insert(0, "tools")
from gen_hop import HDR, FTR, NAME
def gen(D=5, n=4, lanes=1, share=1, sf="sc1", rd=0, pre=0, kb=0, ld='', spread=0, amask=255, astr=1024):
    L = HDR(320, 100*1024); A = L.append
    A("  s_cmp_ge_u32 s2, 256"); A("  s_cbranch_scc1 L_end")
    A("  s_load_dwordx4 s[64:67], s[0:1], 8"); A("  s_load_dwordx2 s[8:9], s[0:1], 96")
    A("  v_lshrrev_b32 v1, 6, v0"); A("  v_and_b32 v0, 63, v0"); A("  v_readfirstlane_b32 s3, v1"); A("  v_lshlrev_b32 v2, 4, v0")
    A("  s_lshl_b32 s21, s2, 20"); A("  s_add_u32 s21, s21, 0xC0000"); A("  s_waitcnt lgkmcnt(0)")
    A("  s_add_u32 s44, s64, s21"); A("  s_addc_u32 s45, s65, 0"); A("  s_mov_b32 s46, 0x40000"); A("  s_mov_b32 s47, 0x20000")
    A("  s_add_u32 s48, s66, s21"); A("  s_addc_u32 s49, s67, 0"); A("  s_mov_b32 s50, 0x40000"); A("  s_mov_b32 s51, 0x20000")
    A("  s_mov_b32 s12, s8"); A("  s_mov_b32 s13, s9"); A("  s_mov_b32 s14, 0x2000000"); A("  s_mov_b32 s15, 0x20000")
    A("  s_cmp_eq_u32 s3, 0"); A("  s_cbranch_scc1 L_w")
    A("  s_lshl_b32 s22, s3, 10"); A("  s_sub_u32 s22, s22, 1024"); A("  s_mov_b32 s24, s22")
    for i in range(128):
        if i == 64: A("  s_mov_b32 s24, s22")
        srd = "s[44:47]" if i < 64 else "s[48:51]"
        if i >= D: A(f"  s_waitcnt vmcnt({D-1})")
        r = 8 + 4 * (i % D)
        A(f"  buffer_load_dwordx4 v[{r}:{r+3}], v2, {srd}, s24 offen nt"); A("  s_add_u32 s24, s24, 4096")
    A("  s_endpgm")
    A("L_w:")
    if kb:
        A(f"  s_and_b32 s22, s2, {amask}")
        A(f"  s_mul_i32 s22, s22, {kb*astr}")
        if spread:
            A("  s_mul_i32 s23, s2, 37"); A("  s_and_b32 s23, s23, 31")
            A("L_d:"); A(f"  s_sleep {spread}"); A("  s_sub_u32 s23, s23, 1"); A("  s_cbranch_scc0 L_d")
        if pre:
            for k in range(kb): A(f"  buffer_load_dwordx4 v[8:11], v2, s[12:15], s22 offen offset:{1024*k} sc1")
            A("  s_waitcnt vmcnt(0)")
        A("  s_sleep 127")
        for k in range(kb):
            if ld: A(f"  buffer_load_dwordx4 v[8:11], v2, s[12:15], s22 offen offset:{1024*k} {ld}")
            else: A(f"  buffer_store_dwordx4 v[4:7], v2, s[12:15], s22 offen offset:{1024*k} {sf}")
        A("  s_endpgm")
    A(f"  s_lshr_b32 s22, s2, {share.bit_length()-1}"); A(f"  s_mul_i32 s22, s22, 4352")
    A(f"  s_and_b32 s23, s2, {share-1}"); A(f"  s_mul_i32 s23, s23, {4*lanes}"); A("  s_add_u32 s22, s22, s23")
    A("  v_lshlrev_b32 v3, 2, v0"); A("  v_mov_b32 v4, 1")
    A(f"  s_mov_b64 exec, {(1 << lanes) - 1 if lanes < 32 else 0x7fffffff}")
    if lanes == 32: A("  s_mov_b32 exec_lo, -1")
    if pre:
        A("  s_mov_b32 s25, s22")
        for k in range(n):
            A(f"  buffer_load_dword v5, v3, s[12:15], s25 offen sc1"); A("  s_add_u32 s25, s25, 0x200000")
        A("  s_waitcnt vmcnt(0)")
    for k in range(n):
        A("  s_sleep 100")
        if rd: A("  s_buffer_load_dword s30, s[12:15], s22 glc"); A("  s_waitcnt lgkmcnt(0)")
        else: A(f"  buffer_store_dword v4, v3, s[12:15], s22 offen {sf}")
        A("  s_add_u32 s22, s22, 0x200000")
    A("L_end:"); A("  s_endpgm")
    return "\n".join(L + FTR()) + "\n"
outs = []
for c in [dict(n=0), dict(kb=1), dict(kb=1, spread=10), dict(kb=1, spread=3), dict(kb=1, spread=10, amask=15), dict(kb=1, spread=10, amask=63), dict(kb=1, spread=10, astr=69632), dict(kb=1, spread=10, ld="sc1"), dict(kb=1, spread=10, sf=""), dict(kb=1, spread=10, sf="sc1 nt"), dict(kb=1, spread=10, pre=1)]:
    nm = "wr_" + "_".join(f"{k}{str(v).replace(' ','')}" for k, v in c.items())
    open(f"exp/{nm}.s", "w").write(gen(**c)); outs.append(f"exp/{nm}.s")
print(json.dumps(outs))
```
